```python
import torch

def _softmax(x, axis=-1):
    return torch.softmax(x, dim=axis)
def _gelu(x):
    return torch.nn.functional.gelu(x, approximate="tanh")
def _silu(x):
    return torch.nn.functional.silu(x)
def _sigmoid(x):
    return torch.sigmoid(x)
def _layernorm(x, axis=-1, eps=1e-5):
    m = x.mean(dim=axis, keepdim=True)
    v = x.var(dim=axis, keepdim=True, unbiased=False)
    return (x - m) / torch.sqrt(v + eps)
def _scatter_add(tgt, idx, src, axis=0):
    return tgt.clone().index_add_(axis, idx, src)
def _segment_sum(src, seg, n):
    out = torch.zeros((n,) + src.shape[1:], dtype=src.dtype)
    return out.index_add_(0, seg, src)
def _pad(x, pw):
    flat = tuple(v for pair in reversed(pw) for v in pair)
    return torch.nn.functional.pad(x, flat)

kernel_name = 'gated_mix__grouped_kv_mqa__grouped_kv_mqa__prompt'

def setup_inputs():

    _w = (lambda a: (lambda t: t.to(torch.bfloat16) if t.is_floating_point() else t)(torch.as_tensor(a)))
    def _A_setup():
        B, S, D, H = 1, 2048, 448, 16
        Dh = D // H
        return {
            "x": _w((lambda *s: torch.randn(*s, dtype=torch.bfloat16) * 0.05)(B, S, D)),
            "wq": _w((lambda *s: torch.randn(*s, dtype=torch.bfloat16) * 0.8)(D, H * Dh)),
            "wk": _w((lambda *s: torch.randn(*s, dtype=torch.bfloat16) * 0.8)(D, Dh)),
            "wv": _w((lambda *s: torch.randn(*s, dtype=torch.bfloat16) * 0.05)(D, Dh)),
            "wo": _w((lambda *s: torch.randn(*s, dtype=torch.bfloat16) * 0.05)(H * Dh, D)),
        }
    _A_in = _A_setup()

    def _B_setup():
        B, S, D, H = 1, 2048, 448, 16
        Dh = D // H
        return {
            "x": _w((lambda *s: torch.randn(*s, dtype=torch.bfloat16) * 0.05)(B, S, D)),
            "wq": _w((lambda *s: torch.randn(*s, dtype=torch.bfloat16) * 0.8)(D, H * Dh)),
            "wk": _w((lambda *s: torch.randn(*s, dtype=torch.bfloat16) * 0.8)(D, Dh)),
            "wv": _w((lambda *s: torch.randn(*s, dtype=torch.bfloat16) * 0.05)(D, Dh)),
            "wo": _w((lambda *s: torch.randn(*s, dtype=torch.bfloat16) * 0.05)(H * Dh, D)),
        }
    _B_in = _B_setup()

    return {
        "A_x": _A_in["x"],
        "A_wq": _A_in["wq"],
        "A_wk": _A_in["wk"],
        "A_wv": _A_in["wv"],
        "A_wo": _A_in["wo"],
        "B_x": _B_in["x"],
        "B_wq": _B_in["wq"],
        "B_wk": _B_in["wk"],
        "B_wv": _B_in["wv"],
        "B_wo": _B_in["wo"],
        "gate_w": _w((lambda *s: torch.randn(*s, dtype=torch.bfloat16) * 0.05)(448) * 16.0),
    }

def reference(A_x, A_wq, A_wk, A_wv, A_wo, B_x, B_wq, B_wk, B_wv, B_wo, gate_w):
    def _A_ref(x, wq, wk, wv, wo):
        B, S, D = x.shape
        H = 16
        Dh = D // H
        q = (lambda x, *d: x.permute(*d))((x @ wq).reshape(B, S, H, Dh), 0, 2, 1, 3)
        k = x @ wk
        v = x @ wv
        scores = torch.einsum("bhqd,bkd->bhqk", q, k) * (Dh ** -0.5)
        p = _softmax(scores, axis=-1)
        o = torch.einsum("bhqk,bkd->bhqd", p, v)
        return (lambda x, *d: x.permute(*d))(o, 0, 2, 1, 3).reshape(B, S, H * Dh) @ wo

    def _B_ref(x, wq, wk, wv, wo):
        B, S, D = x.shape
        H = 16
        Dh = D // H
        q = (lambda x, *d: x.permute(*d))((x @ wq).reshape(B, S, H, Dh), 0, 2, 1, 3)
        k = x @ wk
        v = x @ wv
        scores = torch.einsum("bhqd,bkd->bhqk", q, k) * (Dh ** -0.5)
        p = _softmax(scores, axis=-1)
        o = torch.einsum("bhqk,bkd->bhqd", p, v)
        return (lambda x, *d: x.permute(*d))(o, 0, 2, 1, 3).reshape(B, S, H * Dh) @ wo

    x = A_x
    g = _sigmoid((x * gate_w).sum(-1, keepdims=True))
    a = _A_ref(x, A_wq, A_wk, A_wv, A_wo)
    b = _B_ref(x, B_wq, B_wk, B_wv, B_wo)
    return g * a + (1 - g) * b
```

```python
class Asm:
    def __init__(self):
        self.lines = []
        self._uid = 0

    def e(self, s):
        self.lines.append("    " + s)

    def many(self, seq):
        for s in seq:
            self.e(s)

    def label(self, name):
        self.lines.append(name + ":")

    def c(self, s):
        self.lines.append("    ; " + s)

    def raw(self, s):
        self.lines.append(s)

    def uid(self, base):
        self._uid += 1
        return f"{base}_{self._uid}"

    def text(self):
        return "\n".join(self.lines) + "\n"


def v(i, n=1):
    return f"v{i}" if n == 1 else f"v[{i}:{i+n-1}]"

def a(i, n=1):
    return f"a{i}" if n == 1 else f"a[{i}:{i+n-1}]"

def s(i, n=1):
    return f"s{i}" if n == 1 else f"s[{i}:{i+n-1}]"

def mfma32(d, A, B, c):
    cs = "0" if c is None else v(c, 16)
    return f"v_mfma_f32_32x32x16_bf16 {v(d,16)}, {v(A,4)}, {v(B,4)}, {cs}"

def mfma16(d, A, B, c):
    cs = "0" if c is None else v(c, 4)
    return f"v_mfma_f32_16x16x32_bf16 {v(d,4)}, {v(A,4)}, {v(B,4)}, {cs}"

def perm(s_, h, j):
    return 16 * s_ + (j & 3) + 8 * (j >> 2) + 4 * h

def waitcnt(vm=None, lgkm=None):
    p = []
    if vm is not None: p.append(f"vmcnt({vm})")
    if lgkm is not None: p.append(f"lgkmcnt({lgkm})")
    return "s_waitcnt " + " ".join(p)
```

```python
import sys
sys.path.insert(0, "gen")
from asmlib import *

NAME = "gated_mix__grouped_kv_mqa__grouped_kv_mqa__prompt"
K1 = "gm_kvproj_kernel"
K2 = NAME + "_kernel"

KV_OFF, G_OFF, FLAG_OFF, O_OFF, WS_USED = 0x0, 0x80000, 0x84000, 0x100000, 0x500000
PROF_OFF = 0x600000
X_BYTES, W_BYTES, WK_BYTES = 2048 * 896, 448 * 896, 448 * 56
LOG2E = 1.4426950408889634


def fbits(x):
    import struct
    return "0x%08x" % struct.unpack("<I", struct.pack("<f", x))[0]


class Cnt:
    def __init__(self, cap):
        self.q, self.cap = [], cap

    def issue(self, tag):
        self.q.append(tag)

    def need(self, *tags):
        idx = -1
        for t in tags:
            for i, x in enumerate(self.q):
                if x == t:
                    idx = max(idx, i)
        if idx < 0:
            return None
        n = min(len(self.q) - idx - 1, self.cap)
        self.q = self.q[len(self.q) - n:] if n else []
        return n

    def drain(self):
        self.q = []


class K(Asm):
    def __init__(self):
        super().__init__()
        self.vm, self.lg = Cnt(63), Cnt(15)

    def wait(self, vm=(), lg=()):
        a = self.vm.need(*vm) if vm else None
        b = self.lg.need(*lg) if lg else None
        if a is not None or b is not None:
            self.e(waitcnt(a, b))

    def wait0(self, vm=True, lg=True):
        self.e(waitcnt(0 if vm else None, 0 if lg else None))
        if vm: self.vm.drain()
        if lg: self.lg.drain()

    def ds(self, text, tag):
        self.e(text); self.lg.issue(tag)

    def vmem(self, text, tag):
        self.e(text); self.vm.issue(tag)

    def srd(self, d, lo, hi, n):
        self.e(f"s_mov_b32 s{d}, s{lo}")
        self.e(f"s_mov_b32 s{d+1}, s{hi}")
        self.e(f"s_mov_b32 s{d+2}, {n}")
        self.e(f"s_mov_b32 s{d+3}, 0x20000")


def boff(n):
    assert 0 <= n < 4096, n
    return f" offset:{n}" if n else ""


def doff(n):
    assert 0 <= n < 65536, n
    return f" offset:{n}" if n else ""


K1_LDS = 45056


def gen_k1():
    A = K()
    sW, sB, sKV, sRT, sT, sT2 = 40, 41, 42, 43, 44, 45
    SX, SWT, SG, SWS = 16, 20, 24, 28
    vL16, vT, vT2, vXo, vGo, vTr, vPart = 1, 2, 3, 4, 5, 6, 7
    acc, WF, XF, GF = 16, 32, 64, 96
    PART = 28672
    A.e("s_cmp_ge_u32 s2, 256")
    A.e("s_cbranch_scc1 k1_end")
    A.e(f"s_and_b32 s{sB}, s2, 1")
    A.e(f"s_mul_i32 s3, s{sB}, 40")
    A.e("s_load_dwordx2 s[4:5], s[0:1], 0")
    A.e(f"s_lshr_b32 s{sT}, s2, 3")
    A.e(f"s_and_b32 s{sKV}, s{sT}, 1")
    A.e(f"s_lshl_b32 s{sT2}, s{sKV}, 3")
    A.e(f"s_add_u32 s{sT2}, s{sT2}, s3")
    A.e(f"s_add_u32 s{sT2}, s{sT2}, 16")
    A.e(f"s_load_dwordx2 s[6:7], s[0:1], s{sT2}")
    A.e("s_load_dwordx2 s[8:9], s[0:1], 80")
    A.e("s_load_dwordx2 s[10:11], s[0:1], 104")
    A.e("v_lshrrev_b32 v1, 6, v0")
    A.e("v_and_b32 v0, 63, v0")
    A.e(f"v_readfirstlane_b32 s{sW}, v1")
    A.c("rt = 16*((id&7)>>1) + (id>>4)")
    A.e(f"s_lshr_b32 s{sRT}, s{sT}, 1")
    A.e("s_bfe_u32 s3, s2, 0x20001")
    A.e("s_lshl_b32 s3, s3, 4")
    A.e(f"s_add_u32 s{sRT}, s{sRT}, s3")
    A.e(f"v_lshlrev_b32 v{vL16}, 4, v0")
    A.c("x fragment offset: (l&31)*896 + 16h ; gate offset 16h")
    A.e(f"v_and_b32 v{vT}, 31, v0")
    A.e(f"v_lshrrev_b32 v{vT2}, 5, v0")
    A.e(f"v_lshlrev_b32 v{vGo}, 4, v{vT2}")
    A.e(f"v_mul_u32_u24 v{vXo}, 896, v{vT}")
    A.e(f"v_add_u32 v{vXo}, v{vXo}, v{vGo}")
    A.c("transposed-read address: 7168w + (8h + (i>>2))*56 + 32(g&1) + 8(i&3)")
    A.e(f"v_bfe_u32 v{vTr}, v0, 2, 2")
    A.e(f"v_lshl_add_u32 v{vTr}, v{vT2}, 3, v{vTr}")
    A.e(f"v_mul_u32_u24 v{vTr}, 56, v{vTr}")
    A.e(f"v_bfe_u32 v{vT}, v0, 4, 1")
    A.e(f"v_lshl_add_u32 v{vTr}, v{vT}, 5, v{vTr}")
    A.e(f"v_and_b32 v{vT}, 3, v0")
    A.e(f"v_lshl_add_u32 v{vTr}, v{vT}, 3, v{vTr}")
    A.e(f"s_mul_i32 s46, s{sW}, 7168")
    A.e(f"v_add_u32 v{vTr}, s46, v{vTr}")
    A.e(f"s_mul_i32 s47, s{sW}, 6272")
    A.e(f"s_mul_i32 s48, s{sRT}, {32*896}")
    A.e(f"s_mul_i32 s49, s{sW}, 224")
    A.e("s_add_u32 s48, s48, s49")
    A.e("s_waitcnt lgkmcnt(0)")
    A.srd(SWT, 6, 7, WK_BYTES)
    A.srd(SX, 4, 5, X_BYTES)
    A.e("s_mov_b32 m0, s46")
    A.srd(SG, 8, 9, 896)
    for u in range(7):
        if u == 4:
            A.e("s_add_u32 m0, s46, 4096")
            A.e("s_add_u32 s47, s47, 4096")
        A.vmem(f"buffer_load_dwordx4 v{vL16}, s[{SWT}:{SWT+3}], s47 offen{boff((u & 3) * 1024)} lds", "W")
    for st in range(7):
        A.vmem(f"buffer_load_dwordx4 {v(XF+4*st,4)}, v{vXo}, s[{SX}:{SX+3}], s48 offen{boff(32*st)}", "X")
    for st in range(7):
        A.vmem(f"buffer_load_dwordx4 {v(GF+4*st,4)}, v{vGo}, s[{SG}:{SG+3}], s49 offen{boff(32*st)}", "G")
    A.srd(SWS, 10, 11, WS_USED)
    A.c("flag lines for the second launch are cleared by the first 32 workgroups")
    A.e("s_cmp_lt_u32 s2, 32")
    A.e("s_cbranch_scc0 k1_noflag")
    A.e(f"s_cmp_eq_u32 s{sW}, 0")
    A.e("s_cbranch_scc0 k1_noflag")
    A.e("s_lshl_b32 s3, s2, 7")
    A.e(f"s_add_u32 s3, s3, {FLAG_OFF}")
    A.e(f"v_and_b32 v{vT}, 31, v0")
    A.e(f"v_lshlrev_b32 v{vT}, 2, v{vT}")
    A.e(f"v_mov_b32 v{vT2}, 0")
    A.e(f"buffer_store_dword v{vT2}, v{vT}, s[{SWS}:{SWS+3}], s3 offen")
    A.e("s_waitcnt vmcnt(0)")
    A.label("k1_noflag")
    A.e("s_waitcnt vmcnt(14)")
    for st in range(7):
        for u in range(2):
            A.e(f"ds_read_b64_tr_b16 {v(WF+4*st+2*u,2)}, v{vTr}{doff(896*st+224*u)}")
    A.e(f"v_and_b32 v{vT}, 31, v0")
    A.e(f"v_cmp_eq_u32 vcc, 28, v{vT}")
    A.e(f"s_mul_i32 s3, s{sW}, 4096")
    A.e(f"s_add_u32 s3, s3, {PART}")
    A.e(f"v_add_u32 v{vPart}, s3, v{vL16}")
    A.e("s_waitcnt vmcnt(0) lgkmcnt(0)")
    A.c("column 28 of the weight fragment carries gate_w, so row 28 of the K product is the gate logit")
    for r in range(28):
        A.e(f"v_cndmask_b32 v{WF+r}, v{WF+r}, v{GF+r}, vcc")
    A.e(f"s_cmp_eq_u32 s{sKV}, 0")
    A.e("s_cbranch_scc0 k1_vjob")
    for st in range(7):
        A.e(mfma32(acc, WF + 4 * st, XF + 4 * st, None if st == 0 else acc))
    A.e("s_branch k1_red")
    A.label("k1_vjob")
    for st in range(7):
        A.e(mfma32(acc, XF + 4 * st, WF + 4 * st, None if st == 0 else acc))
    A.label("k1_red")
    A.c("reader address: PART + w*1024 + lane*16, partial p at +4096p")
    A.e(f"s_lshl_b32 s3, s{sW}, 10")
    A.e(f"s_add_u32 s3, s3, {PART}")
    A.e(f"v_add_u32 v{vTr}, s3, v{vL16}")
    A.e("s_nop 7")
    A.e("s_nop 3")
    for q in range(4):
        A.e(f"ds_write_b128 v{vPart}, {v(acc+4*q,4)}{doff(1024*q)}")
    A.e("s_waitcnt lgkmcnt(0)")
    A.e("s_barrier")
    for p in range(4):
        A.e(f"ds_read_b128 {v(32+4*p,4)}, v{vTr}{doff(4096*p)}")
    A.c("store offset: b*262144 + rt*4096 + (2kv + (w>>1))*1024 + 8(w&1) + lane*16")
    A.e(f"s_lshl_b32 s3, s{sB}, 18")
    A.e(f"s_lshl_b32 s50, s{sRT}, 12")
    A.e("s_add_u32 s3, s3, s50")
    A.e(f"s_lshl_b32 s50, s{sKV}, 11")
    A.e("s_add_u32 s3, s3, s50")
    A.e(f"s_lshr_b32 s50, s{sW}, 1")
    A.e("s_lshl_b32 s50, s50, 10")
    A.e("s_add_u32 s3, s3, s50")
    A.e(f"s_and_b32 s50, s{sW}, 1")
    A.e("s_lshl_b32 s50, s50, 3")
    A.e("s_add_u32 s51, s3, s50")
    A.e(f"v_and_b32 v{vT}, 31, v0")
    A.e("s_waitcnt lgkmcnt(2)")
    for r in range(4):
        A.e(f"v_add_f32 v{32+r}, v{32+r}, v{36+r}")
    A.e("s_waitcnt lgkmcnt(0)")
    for r in range(4):
        A.e(f"v_add_f32 v{40+r}, v{40+r}, v{44+r}")
    for r in range(4):
        A.e(f"v_add_f32 v{32+r}, v{32+r}, v{40+r}")
    A.e("v_cvt_pk_bf16_f32 v36, v32, v33")
    A.e("v_cvt_pk_bf16_f32 v37, v34, v35")
    A.e(f"s_cmp_eq_u32 s{sKV}, 0")
    A.e("s_cbranch_scc0 k1_vpad")
    A.e(f"s_cmp_eq_u32 s{sW}, 3")
    A.e("s_cbranch_scc0 k1_store")
    A.c("K, registers 12..15: rows 28..31 live in the upper half-wave")
    A.e("s_mov_b32 exec_lo, 0")
    A.e("v_mov_b32 v36, 0")
    A.e("v_mov_b32 v37, 0")
    A.e(f"s_cmp_eq_u32 s{sB}, 0")
    A.e("s_cbranch_scc0 k1_nogate")
    A.e(f"v_mul_f32 v40, {fbits(-LOG2E)}, v32")
    A.e("v_exp_f32 v40, v40")
    A.e(f"s_lshl_b32 s3, s{sRT}, 7")
    A.e("v_add_f32 v40, 1.0, v40")
    A.e(f"s_add_u32 s3, s3, {G_OFF}")
    A.e("v_rcp_f32 v40, v40")
    A.e(f"v_lshlrev_b32 v41, 2, v{vT}")
    A.e(f"buffer_store_dword v40, v41, s[{SWS}:{SWS+3}], s3 offen")
    A.label("k1_nogate")
    A.e("s_mov_b32 exec_lo, -1")
    A.e("s_branch k1_store")
    A.label("k1_vpad")
    A.e("v_mov_b32 v40, 0")
    A.e("v_mov_b32 v41, 0x3f803f80")
    A.e(f"v_cmp_eq_u32 vcc, 28, v{vT}")
    A.e("s_nop 1")
    A.e("v_cndmask_b32 v40, v40, v41, vcc")
    A.e(f"v_cmp_gt_u32 vcc, 28, v{vT}")
    A.e("s_nop 1")
    A.e("v_cndmask_b32 v36, v40, v36, vcc")
    A.e("v_cndmask_b32 v37, v40, v37, vcc")
    A.label("k1_store")
    A.e(f"buffer_store_dwordx2 v[36:37], v{vL16}, s[{SWS}:{SWS+3}], s51 offen")
    A.label("k1_end")
    A.e("s_endpgm")
    return A.text()


K2_LDS = 163840
QREG = 22784
QX = 14592
WO_L = 98304
FAILW = 159744
XCH = 65536


def gen_k2(prof=False, opts=None):
    o = dict(prio=True)
    o.update(opts or {})
    A = K()
    SX, SWQ, SKV, SWO, SWS, SOUT = 16, 20, 24, 28, 32, 36
    sW, sB, sMT, sHG, sQT, sHL, sCT, sBB = 40, 41, 42, 43, 44, 45, 46, 47
    sKVL, sWoL, sWoG, sT, sT2, sPass, sCnt, sOst, sFlg, sOld = 48, 49, 50, 51, 52, 53, 54, 55, 56, 57
    sWl0, sXl, sXg = 58, 59, 60
    sProf = 64
    vL16, vL16b, vT, vT2, vG, vWoA, vWoA0 = 1, 2, 3, 4, 5, 6, 7
    vQ, vS0, vS1, vP, vO, vK, vV, vC = 8, 16, 32, 48, 56, 72, 80, 88
    TMP, WO = 104, 128
    nprof = [0]

    def stamp():
        if prof:
            A.e(f"s_memtime s[{sProf+2*nprof[0]}:{sProf+2*nprof[0]+1}]")
            A.e("s_waitcnt lgkmcnt(0)")
            A.lg.drain()
            nprof[0] += 1

    def rstamp():
        if prof:
            A.e(f"s_memrealtime s[{sProf+2*nprof[0]}:{sProf+2*nprof[0]+1}]")
            A.e("s_waitcnt lgkmcnt(0)")
            A.lg.drain()
            nprof[0] += 1

    A.e("s_cmp_ge_u32 s2, 256")
    A.e("s_cbranch_scc1 k2_end")
    A.e(f"s_and_b32 s{sB}, s2, 1")
    A.e(f"s_mul_i32 s3, s{sB}, 40")
    A.e("s_load_dwordx2 s[4:5], s[0:1], 0")
    A.e("s_add_u32 s3, s3, 8")
    A.e("s_load_dwordx2 s[6:7], s[0:1], s3")
    A.e("s_load_dwordx2 s[8:9], s[0:1], 32")
    A.e("s_load_dwordx2 s[10:11], s[0:1], 72")
    A.e("s_load_dwordx2 s[12:13], s[0:1], 88")
    A.e("s_load_dwordx2 s[14:15], s[0:1], 104")
    if prof:
        A.e(f"s_memrealtime s[{sProf}:{sProf+1}]")
        A.e(f"s_memtime s[{sProf+2}:{sProf+3}]")
        nprof[0] = 2
    A.e("v_lshrrev_b32 v1, 6, v0")
    A.e("v_and_b32 v0, 63, v0")
    A.e(f"v_readfirstlane_b32 s{sW}, v1")
    A.c("mt = 8*((id&7)>>1) + (id>>5), hg = (id>>3)&3")
    A.e("s_bfe_u32 s3, s2, 0x20001")
    A.e("s_lshl_b32 s3, s3, 3")
    A.e(f"s_lshr_b32 s{sMT}, s2, 5")
    A.e(f"s_add_u32 s{sMT}, s{sMT}, s3")
    A.e(f"s_bfe_u32 s{sHG}, s2, 0x20003")
    A.e(f"v_lshlrev_b32 v{vL16}, 4, v0")
    A.e(f"s_and_b32 s{sQT}, s{sW}, 1")
    A.e(f"s_lshr_b32 s{sHL}, s{sW}, 1")
    A.e(f"s_and_b32 s{sCT}, s{sW}, 3")
    A.e(f"s_lshr_b32 s{sBB}, s{sW}, 2")
    vXs, vW0, vW1 = 104, 105, 106
    vXa = 108
    vWa = 107
    A.c("x source: (8w + (i>>3))*896 + (((i&7) ^ (4(w&1) + (i>>4)))*16)")
    A.e(f"v_lshrrev_b32 v{vT}, 4, v0")
    A.e(f"v_lshl_add_u32 v{vT}, s{sQT}, 2, v{vT}")
    A.e(f"v_and_b32 v{vT2}, 7, v0")
    A.e(f"v_xor_b32 v{vT}, v{vT}, v{vT2}")
    A.e(f"v_lshlrev_b32 v{vT}, 4, v{vT}")
    A.e(f"v_lshrrev_b32 v{vT2}, 3, v0")
    A.e(f"v_lshl_add_u32 v{vT2}, s{sW}, 3, v{vT2}")
    A.e(f"v_mul_u32_u24 v{vT2}, 896, v{vT2}")
    A.e(f"v_add_u32 v{vXs}, v{vT}, v{vT2}")
    A.c("W source: p = 64u+i, pos = p/14, k = (pos&~7) + 4(pos&1) + ((pos&7)>>1), (8w+k)*896 + (p%14)*16")
    for u, dst in ((0, vW0), (1, vW1)):
        A.e(f"v_add_u32 v{vT}, {64*u}, v0")
        A.e(f"v_mul_u32_u24 v{vT2}, 4682, v{vT}")
        A.e(f"v_lshrrev_b32 v{vT2}, 16, v{vT2}")
        A.e(f"v_mul_u32_u24 v112, 14, v{vT2}")
        A.e(f"v_sub_u32 v{vT}, v{vT}, v112")
        A.e(f"v_lshlrev_b32 v{vT}, 4, v{vT}")
        A.e(f"v_and_b32 v112, 8, v{vT2}")
        A.e(f"v_and_b32 v113, 1, v{vT2}")
        A.e(f"v_lshl_add_u32 v112, v113, 2, v112")
        A.e(f"v_bfe_u32 v113, v{vT2}, 1, 2")
        A.e(f"v_add_u32 v112, v112, v113")
        A.e(f"v_lshl_add_u32 v112, s{sW}, 3, v112")
        A.e(f"v_mul_u32_u24 v112, 896, v112")
        A.e(f"v_add_u32 v{dst}, v112, v{vT}")
    A.e(f"s_mul_i32 s{sWl0}, s{sW}, 1792")
    A.e(f"s_lshl_b32 s{sXl}, s{sW}, 10")
    A.e(f"s_add_u32 s{sXl}, s{sXl}, {QX}")
    A.e(f"s_mul_i32 s{sXg}, s{sMT}, {64*896}")
    A.e(f"s_mul_i32 s{sT2}, s{sHG}, 224")
    A.e("s_waitcnt lgkmcnt(0)")
    A.srd(SX, 4, 5, X_BYTES)
    A.e(f"s_add_u32 s{SWQ}, s6, s{sT2}")
    A.e(f"s_addc_u32 s{SWQ+1}, s7, 0")
    A.e(f"s_sub_u32 s{SWQ+2}, {W_BYTES}, s{sT2}")
    A.e(f"s_mov_b32 s{SWQ+3}, 0x20000")
    for c in range(7):
        for u, src in ((0, vW0), (1, vW1)):
            A.e(f"s_add_u32 m0, s{sWl0}, {QREG*c + 1024*u}")
            if u == 0:
                A.e(f"s_mov_b32 s{sT}, {57344*c}")
            else:
                A.e("s_nop 0")
            A.vmem(f"buffer_load_dwordx4 v{src}, s[{SWQ}:{SWQ+3}], s{sT} offen lds", ("Q", c))
        A.e(f"s_add_u32 m0, s{sXl}, {(QREG-128)*c}")
        A.e("s_nop 0")
        A.vmem(f"buffer_load_dwordx4 v{vXs}, s[{SX}:{SX+3}], s{sXg} offen{boff(128*c)} lds", ("Q", c))
    A.e(f"s_lshl_b32 s3, s{sB}, 18")
    A.e(f"s_add_u32 s{SKV}, s14, s3")
    A.e(f"s_addc_u32 s{SKV+1}, s15, 0")
    A.e(f"s_mov_b32 s{SKV+2}, 0x40000")
    A.e(f"s_mov_b32 s{SKV+3}, 0x20000")
    A.e(f"s_cmp_eq_u32 s{sBB}, 0")
    A.e(f"s_cselect_b32 s{SWO}, s8, s10")
    A.e(f"s_cselect_b32 s{SWO+1}, s9, s11")
    A.e(f"s_mov_b32 s{SWO+2}, {W_BYTES}")
    A.e(f"s_mov_b32 s{SWO+3}, 0x20000")
    A.srd(SWS, 14, 15, WS_USED)
    A.srd(SOUT, 12, 13, X_BYTES)
    A.e(f"s_lshl_b32 s{sKVL}, s{sW}, 12")
    A.e(f"s_mul_i32 s{sWoL}, s{sW}, 7168")
    A.e(f"s_add_u32 s{sWoL}, s{sWoL}, {WO_L}")
    A.e(f"s_mul_i32 s{sWoG}, s{sHG}, 224")
    A.e(f"s_lshl_b32 s3, s{sCT}, 6")
    A.e(f"s_add_u32 s{sWoG}, s{sWoG}, s3")
    A.e(f"s_mov_b32 s{sPass}, 0")
    A.c("o image of this wave: O_OFF + ((mt*2+qt)*2+b)*32768 + head*2048")
    A.e(f"s_lshl_b32 s3, s{sMT}, 1")
    A.e(f"s_add_u32 s3, s3, s{sQT}")
    A.e("s_lshl_b32 s3, s3, 1")
    A.e(f"s_add_u32 s3, s3, s{sB}")
    A.e("s_lshl_b32 s3, s3, 15")
    A.e(f"s_lshl_b32 s{sT}, s{sHG}, 2")
    A.e(f"s_add_u32 s{sT}, s{sT}, s{sHL}")
    A.e(f"s_lshl_b32 s{sT}, s{sT}, 11")
    A.e(f"s_add_u32 s3, s3, s{sT}")
    A.e(f"s_add_u32 s{sOst}, s3, {O_OFF}")
    A.c("flag line of this row block; o images consumed: q-tile b of block mt")
    A.e(f"s_lshl_b32 s{sFlg}, s{sMT}, 7")
    A.e(f"s_add_u32 s{sFlg}, s{sFlg}, {FLAG_OFF}")
    A.e(f"s_lshl_b32 s3, s{sMT}, 1")
    A.e(f"s_add_u32 s3, s3, s{sB}")
    A.e("s_lshl_b32 s3, s3, 16")
    A.e(f"s_add_u32 s{sOld}, s3, {O_OFF}")
    A.e(f"v_add_u32 v{vL16b}, 0x10000, v{vL16}")
    A.c("W transposed read: (8h + 2(i>>2))*224 + 56hl + 32(g&1) + 8(i&3)")
    A.e(f"v_lshrrev_b32 v{vT}, 5, v0")
    A.e(f"v_bfe_u32 v{vT2}, v0, 2, 2")
    A.e(f"v_lshlrev_b32 v{vT2}, 1, v{vT2}")
    A.e(f"v_lshl_add_u32 v{vT2}, v{vT}, 3, v{vT2}")
    A.e(f"v_mul_u32_u24 v{vWa}, 224, v{vT2}")
    A.e(f"v_bfe_u32 v{vT2}, v0, 4, 1")
    A.e(f"v_lshlrev_b32 v{vT2}, 5, v{vT2}")
    A.e(f"v_and_b32 v112, 3, v0")
    A.e(f"v_lshl_add_u32 v{vT2}, v112, 3, v{vT2}")
    A.e(f"v_add_u32 v{vWa}, v{vWa}, v{vT2}")
    A.e(f"s_mul_i32 s3, s{sHL}, 56")
    A.e(f"v_add_u32 v{vWa}, s3, v{vWa}")
    A.c("Wo transposed read: WoL + (4h + (i>>2))*64 + 32(g&1) + 8(i&3); variant with h = 0 for the padded rows")
    A.e(f"v_bfe_u32 v112, v0, 2, 2")
    A.e(f"v_lshl_add_u32 v{vWoA0}, v112, 6, v{vT2}")
    A.e(f"v_add_u32 v{vWoA0}, s{sWoL}, v{vWoA0}")
    A.e(f"v_lshl_add_u32 v{vWoA}, v{vT}, 8, v{vWoA0}")
    A.c("x fragment read: QX + q*128 + (((2st+h) ^ ((q>>1)&7))*16), q = 32qt + (l&31)")
    A.e(f"v_and_b32 v112, 31, v0")
    A.e(f"v_bfe_u32 v113, v0, 1, 3")
    A.e(f"v_xor_b32 v113, v113, v{vT}")
    A.e(f"v_lshlrev_b32 v113, 4, v113")
    A.e(f"v_lshl_add_u32 v113, v112, 7, v113")
    A.e(f"s_lshl_b32 s3, s{sQT}, 12")
    A.e(f"s_add_u32 s3, s3, {QX}")
    A.e(f"v_add_u32 v{vXa}, s3, v113")
    for st in range(1, 4):
        A.e(f"v_xor_b32 v{vXa+st}, {st << 5}, v{vXa}")
    for r in range(16):
        A.e(f"v_mov_b32 v{vC+r}, 0")
    stamp()

    def kv_dma(chunk, k):
        A.vmem(f"buffer_load_dwordx4 v{vL16}, s[{SKV}:{SKV+3}], s{sT} offen{boff(1024*k)} lds", ("KV", chunk))

    def kv_m0(chunk):
        A.e(f"s_add_u32 m0, s{sKVL}, {(chunk % 3) * 32768}")
        A.e(f"s_add_u32 s{sT}, s{sKVL}, {chunk * 32768}")

    QB = [128, 160]
    def q_mfma(c):
        b0 = QB[c & 1]
        for st in range(4):
            A.e(mfma32(vS0, b0 + 4 * st, b0 + 16 + 4 * st, None if (c == 0 and st == 0) else vS0))
    for c in range(7):
        a = A.vm.need(("Q", c))
        A.e(waitcnt(a, 0)); A.lg.drain()
        A.e("s_barrier")
        if c in (2, 3):
            kv_m0(c - 2)
            for k in range(4):
                kv_dma(c - 2, k)
        b0 = QB[c & 1]
        for st in range(4):
            for u in range(2):
                A.ds(f"ds_read_b64_tr_b16 {v(b0+4*st+2*u,2)}, v{vWa}{doff((16*st+u)*224)}", "q")
            A.ds(f"ds_read_b128 {v(b0+16+4*st,4)}, v{vXa+st}", "q")
        if c > 0:
            q_mfma(c - 1)
        if c < 6:
            A.e(f"v_add_u32 v{vWa}, {QREG}, v{vWa}")
            for st in range(4):
                A.e(f"v_add_u32 v{vXa+st}, {QREG}, v{vXa+st}")
    A.wait0(vm=False)
    q_mfma(6)
    sc = (28 ** -0.5) * LOG2E
    A.e(f"s_mov_b32 s{sT2}, {fbits(sc)}")
    A.e("s_nop 7")
    A.e("s_nop 3")
    for r in range(16):
        A.e(f"v_mul_f32 v{vS0+r}, s{sT2}, v{vS0+r}")
    for k in range(8):
        A.e(f"v_cvt_pk_bf16_f32 v{vQ+k}, v{vS0+2*k}, v{vS0+2*k+1}")
    A.e("s_mov_b32 exec_lo, 0")
    A.e(f"v_mov_b32 v{vQ+6}, 0")
    A.e(f"v_mov_b32 v{vQ+7}, 0")
    A.e("s_mov_b32 exec_lo, -1")
    stamp()

    def ring(t, part):
        slot = (t >> 3) % 3
        off = slot * 32768 + (t & 7) * 4096 + part * 1024
        return (vL16, off) if off < 65536 else (vL16b, off - 65536)

    def rd(dst, t, part):
        base, off = ring(t, part)
        A.ds(f"ds_read_b128 {v(dst,4)}, v{base}{doff(off)}", (t, part))

    def wo_dma(r, u):
        A.e(f"s_add_u32 m0, s{sWoL}, {1024*u}")
        A.e(f"s_add_u32 s{sT2}, s{sWoG}, {(112*r+16*u)*896}")
        return (f"buffer_load_dwordx4 v{vWoS}, s[{SWO}:{SWO+3}], s{sT2} offen lds", ("WO", r))

    def wo_rd(r, n):
        hd, s_, u = n >> 2, (n >> 1) & 1, n & 1
        base = vWoA0 if (s_ == 1 and u == 1) else vWoA
        dst = WO + 8 * (4 * r + hd) + 4 * s_ + 2 * u
        A.ds(f"ds_read_b64_tr_b16 {v(dst,2)}, v{base}{doff((28*hd+16*s_+8*u)*64)}", ("wo", r))

    vWoS = 104
    A.c("Wo staging source: (i>>2)*896 + (i&3)*16")
    A.e(f"v_lshrrev_b32 v{vT}, 2, v0")
    A.e(f"v_mul_u32_u24 v{vT}, 896, v{vT}")
    A.e(f"v_and_b32 v{vT2}, 3, v0")
    A.e(f"v_lshl_add_u32 v{vWoS}, v{vT2}, 4, v{vT}")

    A.label("k2_attn")
    A.wait0()
    A.e("s_barrier")
    stamp()
    rd(vK, 0, 0); rd(vK + 4, 0, 1)
    A.wait(lg=[(0, 1)])
    A.e(mfma32(vS0, vK, vQ, vC))
    A.e(mfma32(vS0, vK + 4, vQ + 4, vS0))
    rd(vK, 1, 0); rd(vK + 4, 1, 1); rd(vV, 0, 2)
    A.e("s_nop 7")
    A.e("s_nop 3")
    for t in range(64):
        n, i = t >> 3, t & 7
        Sc = vS0 if t % 2 == 0 else vS1
        Sn = vS1 if t % 2 == 0 else vS0
        E = lambda r: A.e(f"v_exp_f32 v{Sc+r}, v{Sc+r}")
        C = lambda k: A.e(f"v_cvt_pk_bf16_f32 v{vP+k}, v{Sc+2*k}, v{Sc+2*k+1}")
        extra = []
        kvp = (n < 6 and i < 4)
        wod = []
        if n % 2 == 0 and i >= 4:
            wod = [2 * (i - 4), 2 * (i - 4) + 1] if i < 7 else [6]
        wor = []
        if n % 2 == 0 and n >= 2 and i < 4:
            wor = list(range(4 * i, 4 * i + 4))
        if o["prio"] and i % 2 == 0:
            A.e(f"s_setprio {3 - i // 2}")
        if kvp and i == 0:
            kv_m0(n + 2)
        tags = []
        if t < 63: tags.append((t + 1, 0))
        if t > 0: tags.append((t - 1, 3))
        A.wait(lg=tags)
        if t < 63:
            A.e(mfma32(Sn, vK, vQ, vC))
        if t + 2 < 64:
            rd(vK, t + 2, 0)
        E(0); E(1); E(2); C(0); E(3)
        if t > 0:
            A.e(mfma32(vO, vV + 4, vP + 4, vO))
        rd(vV + 4, t, 3)
        if kvp:
            kv_dma(n + 2, i)
        pend = None
        if wod:
            A.wait(lg=[("wo", n // 2 - 1)])
            pend = wo_dma(n // 2, wod[0])
        E(4)
        if pend:
            A.vmem(*pend)
        C(1); E(5); E(6); C(2); E(7)
        tags = [(t, 2)]
        if t < 63: tags.append((t + 1, 1))
        A.wait(lg=tags)
        if t < 63:
            A.e(mfma32(Sn, vK + 4, vQ + 4, Sn))
        if t + 2 < 64:
            rd(vK + 4, t + 2, 1)
        pend = None
        if len(wod) > 1:
            pend = wo_dma(n // 2, wod[1])
        E(8)
        if pend:
            A.vmem(*pend)
        C(3); E(9); E(10); C(4); E(11)
        A.e(mfma32(vO, vV, vP, None if t == 0 else vO))
        if t + 1 < 64:
            rd(vV, t + 1, 2)
        for x in wor:
            wo_rd(n // 2 - 1, x)
        E(12); C(5); E(13); E(14); E(15); C(6); C(7)
        if i == 7 and n < 6:
            a = A.vm.need(("KV", n + 2))
            b = A.lg.need((t, 3))
            A.e(waitcnt(a, b))
            A.e("s_barrier")
    A.wait(lg=[(63, 3)])
    A.e("s_nop 1")
    A.e(mfma32(vO, vV + 4, vP + 4, vO))
    if o["prio"]:
        A.e("s_setprio 0")
    stamp()

    A.c("gate value of the output rows: g[64mt + 32b + (l&31)]")
    A.e(f"v_and_b32 v{vT}, 31, v0")
    A.e(f"v_lshlrev_b32 v{vT}, 2, v{vT}")
    A.e(f"s_lshl_b32 s3, s{sMT}, 8")
    A.e(f"s_lshl_b32 s{sT}, s{sB}, 7")
    A.e(f"s_add_u32 s3, s3, s{sT}")
    A.e(f"s_add_u32 s3, s3, {G_OFF}")
    A.vmem(f"buffer_load_dword v{vG}, v{vT}, s[{SWS}:{SWS+3}], s3 offen", "g")
    A.e("s_nop 7")
    A.e("s_nop 1")
    vLs, vLt, vSum = TMP + 8, TMP + 9, TMP + 10
    A.e(f"v_mov_b32 v{vLs}, v{vO+12}")
    A.e(f"v_mov_b32 v{vLt}, v{vO+12}")
    A.e(f"v_add_f32 v{vSum}, v{vO}, v{vO+1}")
    A.e(f"v_add_f32 v{vSum}, v{vSum}, v{vO+2}")
    A.e(f"v_permlane32_swap_b32 v{vLs}, v{vLt}")
    for r in range(3, 16):
        A.e(f"v_add_f32 v{vSum}, v{vSum}, v{vO+r}")
    A.e(f"v_rcp_f32 v{vLs}, v{vLt}")
    A.c("row sum must lie in [2^-24, 2^100] and every accumulator must be finite, else redo with the true row maximum")
    A.e(f"s_mov_b32 s{sT}, 0x207")
    A.e(f"v_cmp_class_f32 vcc, v{vSum}, s{sT}")
    A.e(f"s_mov_b32 s{sT}, {fbits(2.0**-24)}")
    A.e(f"v_cmp_nle_f32 s[62:63], s{sT}, v{vLt}")
    A.e("s_or_b64 vcc, vcc, s[62:63]")
    A.e(f"s_mov_b32 s{sT}, {fbits(2.0**100)}")
    A.e(f"v_cmp_nge_f32 s[62:63], s{sT}, v{vLt}")
    A.e("s_or_b64 vcc, vcc, s[62:63]")
    A.e("s_cmp_lg_u64 vcc, 0")
    A.e(f"s_cselect_b32 s{sT}, 1, 0")
    A.e(f"s_cmp_eq_u32 s{sPass}, 0")
    A.e(f"s_cselect_b32 s{sT}, s{sT}, 0")
    A.e(f"v_mov_b32 v{vT}, s{sT}")
    A.e(f"s_lshl_b32 s3, s{sW}, 2")
    A.e(f"s_add_u32 s3, s3, {FAILW}")
    A.e(f"v_mov_b32 v{vT2}, s3")
    A.e("s_mov_b64 exec, 1")
    A.e(f"ds_write_b32 v{vT2}, v{vT}")
    A.e("s_mov_b64 exec, -1")
    for r in range(16):
        A.e(f"v_mul_f32 v{vO+r}, v{vO+r}, v{vLs}")
    for k in range(8):
        A.e(f"v_cvt_pk_bf16_f32 v{vP+k}, v{vO+2*k}, v{vO+2*k+1}")
    A.e("s_mov_b32 exec_lo, 0")
    A.e(f"v_mov_b32 v{vP+6}, 0")
    A.e(f"v_mov_b32 v{vP+7}, 0")
    A.e("s_mov_b32 exec_lo, -1")
    A.e(f"buffer_store_dwordx4 {v(vP,4)}, v{vL16}, s[{SWS}:{SWS+3}], s{sOst} offen sc1")
    A.e(f"buffer_store_dwordx4 {v(vP+4,4)}, v{vL16}, s[{SWS}:{SWS+3}], s{sOst} offen offset:1024 sc1")
    A.e(f"v_and_b32 v{vT}, 7, v0")
    A.e(f"v_lshlrev_b32 v{vT}, 2, v{vT}")
    A.e(f"v_add_u32 v{vT2}, {FAILW}, v{vT}")
    A.e("s_waitcnt lgkmcnt(0)")
    A.e("s_barrier")
    A.e(f"ds_read_b32 v{vT2}, v{vT2}")
    A.e("s_waitcnt vmcnt(0) lgkmcnt(0)")
    A.vm.drain(); A.lg.drain()
    A.e(f"v_cmp_ne_u32 vcc, 0, v{vT2}")
    A.e("s_cbranch_vccnz k2_fallback")
    A.e("s_barrier")
    if prof: stamp()
    A.c("publish: one flag dword per member b*4 + hg")
    A.e(f"s_cmp_eq_u32 s{sW}, 0")
    A.e("s_cbranch_scc0 k2_noflag")
    A.e(f"s_lshl_b32 s3, s{sB}, 2")
    A.e(f"s_add_u32 s3, s3, s{sHG}")
    A.e("s_lshl_b32 s3, s3, 2")
    A.e(f"s_add_u32 s3, s3, s{sFlg}")
    A.e(f"v_mov_b32 v{vT2}, 1")
    A.e(f"v_mov_b32 v{TMP}, 0")
    A.e("s_mov_b64 exec, 1")
    A.e(f"buffer_store_dword v{vT2}, v{TMP}, s[{SWS}:{SWS+3}], s3 offen sc1")
    A.e("s_mov_b64 exec, -1")
    A.label("k2_noflag")
    for x in range(16):
        wo_rd(3, x)
    A.e(f"s_cmp_eq_u32 s{sW}, 0")
    A.e("s_cbranch_scc0 k2_nopoll")
    A.e(f"s_mov_b32 s{sCnt}, 0")
    A.label("k2_poll")
    A.e(f"buffer_load_dword v{vT2}, v{vT}, s[{SWS}:{SWS+3}], s{sFlg} offen sc1")
    A.e(f"s_add_u32 s{sCnt}, s{sCnt}, 1")
    A.e("s_waitcnt vmcnt(0)")
    A.e(f"v_cmp_ne_u32 vcc, 1, v{vT2}")
    A.e("s_cbranch_vccz k2_nopoll")
    A.e(f"s_cmp_lt_u32 s{sCnt}, 0x40000")
    A.e("s_cbranch_scc1 k2_poll")
    A.label("k2_nopoll")
    A.e("s_barrier")
    if prof: stamp()
    A.c("o fragments: wave loads branch bb, head 4*stage + ct; LDS image [bb][head][s][lane]")
    A.e(f"s_lshl_b32 s3, s{sBB}, 15")
    A.e(f"s_lshl_b32 s{sT}, s{sCT}, 11")
    A.e(f"s_add_u32 s3, s3, s{sT}")
    A.e(f"s_add_u32 s{sT}, s3, s{sOld}")
    for st in range(4):
        A.e(f"s_add_u32 m0, s3, {8192*st}")
        A.e(f"s_add_u32 s{sT2}, s{sT}, {8192*st}")
        for k in range(2):
            A.vmem(f"buffer_load_dwordx4 v{vL16}, s[{SWS}:{SWS+3}], s{sT2} offen{boff(1024*k)} sc1 lds", ("O", st))
    vOb = TMP + 11
    A.e(f"s_lshl_b32 s3, s{sBB}, 15")
    A.e(f"v_add_u32 v{vOb}, s3, v{vL16}")
    A.c("scale: g for branch A, 1 - g for branch B")
    A.e(f"v_sub_f32 v{vT2}, 1.0, v{vG}")
    A.e(f"s_cmp_eq_u32 s{sBB}, 0")
    A.e("s_cselect_b64 vcc, -1, 0")
    A.e(f"v_cndmask_b32 v{vG}, v{vT2}, v{vG}, vcc")
    ACC = vC
    OB = [16, 48]
    def o_mfma(st):
        b0 = OB[st & 1]
        for hd in range(4):
            for s_ in range(2):
                H = 4 * st + hd
                A.e(mfma32(ACC, WO + 8 * H + 4 * s_, b0 + 8 * hd + 4 * s_, None if (st == 0 and hd == 0 and s_ == 0) else ACC))
    for st in range(4):
        A.wait(vm=[("O", st)])
        A.e("s_barrier")
        b0 = OB[st & 1]
        for hd in range(4):
            for s_ in range(2):
                A.ds(f"ds_read_b128 {v(b0+8*hd+4*s_,4)}, v{vOb}{doff((4*st+hd)*2048+s_*1024)}", ("ob", st))
        if st > 0:
            o_mfma(st - 1)
        A.wait(lg=[("ob", st)])
    o_mfma(3)
    A.c("exchange halves with the wave of the other branch")
    A.e(f"s_lshl_b32 s3, s{sW}, 11")
    A.e(f"s_add_u32 s3, s3, {XCH}")
    A.e(f"v_add_u32 v{vT}, s3, v{vL16}")
    A.e(f"s_xor_b32 s3, s{sW}, 4")
    A.e("s_lshl_b32 s3, s3, 11")
    A.e(f"s_add_u32 s3, s3, {XCH}")
    A.e(f"v_add_u32 v{vT2}, s3, v{vL16}")
    A.c("output offset: (64mt + 32b + (l&31))*896 + (112hg + 32ct + 16bb + 8h)*2")
    vOut = TMP + 12
    A.e(f"v_and_b32 v{vOut}, 31, v0")
    A.e(f"v_mul_u32_u24 v{vOut}, 896, v{vOut}")
    A.e(f"v_lshrrev_b32 v{TMP}, 5, v0")
    A.e(f"v_lshl_add_u32 v{vOut}, v{TMP}, 4, v{vOut}")
    A.e(f"s_lshl_b32 s3, s{sMT}, 1")
    A.e(f"s_add_u32 s3, s3, s{sB}")
    A.e(f"s_mul_i32 s3, s3, {32*896}")
    A.e(f"s_lshl_b32 s{sT}, s{sBB}, 5")
    A.e(f"s_add_u32 s3, s3, s{sT}")
    A.e(f"s_add_u32 s{sT}, s3, s{sWoG}")
    for r in range(16):
        A.e(f"v_mul_f32 v{ACC+r}, v{ACC+r}, v{vG}")
    A.e(f"s_cmp_eq_u32 s{sBB}, 0")
    A.e("s_cbranch_scc0 k2_xb")
    A.e(f"ds_write_b128 v{vT}, {v(ACC+8,4)}")
    A.e(f"ds_write_b128 v{vT}, {v(ACC+12,4)} offset:1024")
    for r in range(8):
        A.e(f"v_mov_b32 v{16+r}, v{ACC+r}")
    A.e("s_branch k2_xj")
    A.label("k2_xb")
    A.e(f"ds_write_b128 v{vT}, {v(ACC,4)}")
    A.e(f"ds_write_b128 v{vT}, {v(ACC+4,4)} offset:1024")
    for r in range(8):
        A.e(f"v_mov_b32 v{16+r}, v{ACC+8+r}")
    A.label("k2_xj")
    A.e("s_waitcnt lgkmcnt(0)")
    A.e("s_barrier")
    A.e(f"ds_read_b128 v[24:27], v{vT2}")
    A.e(f"ds_read_b128 v[28:31], v{vT2} offset:1024")
    A.e("s_waitcnt lgkmcnt(0)")
    for r in range(8):
        A.e(f"v_add_f32 v{16+r}, v{16+r}, v{24+r}")
    for k in range(4):
        A.e(f"v_cvt_pk_bf16_f32 v{24+k}, v{16+2*k}, v{16+2*k+1}")
    A.e("s_nop 1")
    A.e("v_permlane32_swap_b32 v24, v26")
    A.e("v_permlane32_swap_b32 v25, v27")
    A.e(f"s_cmp_eq_u32 s{sW}, 7")
    A.e("s_cbranch_scc1 k2_nostore")
    A.e(f"buffer_store_dwordx4 v[24:27], v{vOut}, s[{SOUT}:{SOUT+3}], s{sT} offen")
    A.label("k2_nostore")
    if prof:
        A.e("s_waitcnt vmcnt(0)")
        stamp()
        rstamp()
        A.e(f"s_cmp_eq_u32 s{sW}, 0")
        A.e("s_cbranch_scc0 k2_end")
        A.e("s_lshl_b32 s3, s2, 7")
        A.e(f"s_add_u32 s3, s3, {PROF_OFF}")
        A.e(f"s_mov_b32 s{SWS+2}, 0x800000")
        A.e("s_mov_b64 exec, 1")
        A.e("v_mov_b32 v1, 0")
        for k in range(nprof[0]):
            A.e(f"v_mov_b32 v2, s{sProf+2*k}")
            A.e(f"buffer_store_dword v2, v1, s[{SWS}:{SWS+3}], s3 offen{boff(4*k)}")
            A.e("s_waitcnt vmcnt(0)")
    A.e("s_branch k2_end")

    A.label("k2_fallback")
    A.e(f"s_mov_b32 s{sPass}, 1")
    vM = TMP + 8
    A.e(f"v_mov_b32 v{vM}, 0xff800000")
    A.e(f"s_mov_b32 s{sT}, 0")
    A.label("k2_maxloop")
    A.e(f"buffer_load_dwordx4 {v(vK,4)}, v{vL16}, s[{SKV}:{SKV+3}], s{sT} offen")
    A.e(f"buffer_load_dwordx4 {v(vK+4,4)}, v{vL16}, s[{SKV}:{SKV+3}], s{sT} offen offset:1024")
    A.e("s_waitcnt vmcnt(0)")
    A.e(mfma32(vS0, vK, vQ, None))
    A.e(mfma32(vS0, vK + 4, vQ + 4, vS0))
    A.e(f"s_add_u32 s{sT}, s{sT}, 4096")
    A.e("s_nop 7")
    A.e("s_nop 3")
    for k in range(8):
        A.e(f"v_max3_f32 v{vM}, v{vS0+2*k}, v{vS0+2*k+1}, v{vM}")
    A.e(f"s_cmp_lt_u32 s{sT}, 0x40000")
    A.e("s_cbranch_scc1 k2_maxloop")
    A.e(f"v_mov_b32 v{vM+1}, v{vM}")
    A.e("s_nop 1")
    A.e(f"v_permlane32_swap_b32 v{vM}, v{vM+1}")
    A.e("s_nop 1")
    A.e(f"v_max_f32 v{vM}, v{vM}, v{vM+1}")
    for r in range(16):
        A.e(f"v_sub_f32 v{vC+r}, 0, v{vM}")
    A.e("s_barrier")
    for ch in range(2):
        kv_m0(ch)
        A.e("s_nop 0")
        for k in range(4):
            kv_dma(ch, k)
    A.e("s_branch k2_attn")
    A.label("k2_end")
    A.e("s_endpgm")
    return A.text()


HEADER = """; Gated mix of two multi-query attention branches, S=2048, D=448, H=16, Dh=28.
; @launch kernel={k1} grid=(256,1,1) block=(256,1,1) lds={l1}
; @launch kernel={k2} grid=(256,1,1) block=(512,1,1) lds={l2}
.amdgcn_target "amdgcn-amd-amdhsa--gfx950"
.text
"""

KD = """.amdhsa_kernel {name}
  .amdhsa_next_free_vgpr {nv}
  .amdhsa_next_free_sgpr 102
  .amdhsa_accum_offset {nv}
  .amdhsa_group_segment_fixed_size 0
  .amdhsa_kernarg_size 112
  .amdhsa_user_sgpr_count 2
  .amdhsa_user_sgpr_kernarg_segment_ptr 1
  .amdhsa_system_sgpr_workgroup_id_x 1
.end_amdhsa_kernel
"""


def build(prof=False, opts=None):
    t = HEADER.format(k1=K1, k2=K2, l1=K1_LDS, l2=K2_LDS)
    for name, body in ((K1, gen_k1()), (K2, gen_k2(prof, opts))):
        t += f".globl {name}\n.p2align 8\n.type {name},@function\n{name}:\n" + body
    t += '.section .rodata,"a"\n'
    for name, nv in ((K1, 128), (K2, 256)):
        t += ".p2align 6\n" + KD.format(name=name, nv=nv)
    return t


if __name__ == "__main__":
    out = sys.argv[1] if len(sys.argv) > 1 else f"cdna_kernels/{NAME}.s"
    prof = "prof" in sys.argv[2:]
    open(out, "w").write(build(prof))
    print("wrote", out)
```

```python
import sys
sys.path.insert(0, "gen")
from asmlib import *

NAME = "gated_mix__grouped_kv_mqa__grouped_kv_mqa__prompt"
KN = NAME + "_kernel"

KV_OFF, G_OFF, SEED_OFF, FLAG_OFF, KVF_OFF, O_OFF, WS_USED = 0x0, 0x80000, 0x83000, 0x84000, 0x88000, 0x100000, 0x500000
TAG_HI, TAG_LO = 0x9E3779B9, 0x7F4A7C15
PROF_OFF = 0x600000
X_BYTES, W_BYTES, WK_BYTES = 2048 * 896, 448 * 896, 448 * 56
LOG2E = 1.4426950408889634


def fbits(x):
    import struct
    return "0x%08x" % struct.unpack("<I", struct.pack("<f", x))[0]


class Cnt:
    def __init__(self, cap):
        self.q, self.cap = [], cap

    def issue(self, tag):
        self.q.append(tag)

    def need(self, *tags):
        idx = -1
        for t in tags:
            for i, x in enumerate(self.q):
                if x == t:
                    idx = max(idx, i)
        if idx < 0:
            return None
        n = min(len(self.q) - idx - 1, self.cap)
        self.q = self.q[len(self.q) - n:] if n else []
        return n

    def drain(self):
        self.q = []


class K(Asm):
    def __init__(self):
        super().__init__()
        self.vm, self.lg = Cnt(63), Cnt(15)

    def wait(self, vm=(), lg=()):
        a = self.vm.need(*vm) if vm else None
        b = self.lg.need(*lg) if lg else None
        if a is not None or b is not None:
            self.e(waitcnt(a, b))

    def wait0(self, vm=True, lg=True):
        self.e(waitcnt(0 if vm else None, 0 if lg else None))
        if vm: self.vm.drain()
        if lg: self.lg.drain()

    def ds(self, text, tag):
        self.e(text); self.lg.issue(tag)

    def vmem(self, text, tag):
        self.e(text); self.vm.issue(tag)

    def srd(self, d, lo, hi, n):
        self.e(f"s_mov_b32 s{d}, s{lo}")
        self.e(f"s_mov_b32 s{d+1}, s{hi}")
        self.e(f"s_mov_b32 s{d+2}, {n}")
        self.e(f"s_mov_b32 s{d+3}, 0x20000")


def boff(n):
    assert 0 <= n < 4096, n
    return f" offset:{n}" if n else ""


def doff(n):
    assert 0 <= n < 65536, n
    return f" offset:{n}" if n else ""


LDS = 163840
WA = 0
XL = 71936
KVR = 129280
WO_L = 98304
FAILW = 159744
XCH = 65536


def gen(prof=False, opts=None):
    o = dict(prio=True, R=16, pollc=5)
    o.update(opts or {})
    R = o["R"]
    A = K()
    SX, SWQ, SKV, SWO, SWS, SOUT, SWK, SG = 16, 20, 24, 28, 32, 36, 88, 92
    sW, sB, sMT, sHG, sQT, sHL, sCT, sBB = 40, 41, 42, 43, 44, 45, 46, 47
    sKVL, sWoL, sWoG, sT, sT2, sPass, sCnt, sOst, sFlg, sOld = 48, 49, 50, 51, 52, 53, 54, 55, 56, 57
    sWl0, sXl, sXg, sT3 = 58, 59, 60, 61
    sProf, sCyc, sN = 64, 80, 100
    vL16, vL16b, vT, vT2, vG, vWoA, vWoA0 = 1, 2, 3, 4, 5, 6, 7
    vQ, vS0, vS1, vP, vO, vK, vV, vC = 8, 16, 32, 48, 56, 72, 80, 88
    TMP, WO = 104, 128
    names = []

    def stamp(name, cyc=None):
        if prof:
            A.e("s_memrealtime s[96:97]")
            if cyc is not None:
                A.e("s_memtime s[98:99]")
            A.e("s_waitcnt lgkmcnt(0)")
            A.lg.drain()
            A.e(f"s_mov_b32 s{sProf+len(names)}, s96")
            if cyc is not None:
                A.e(f"s_mov_b32 s{sCyc+cyc}, s98")
            names.append(name)

    A.e("s_cmp_ge_u32 s2, 256")
    A.e("s_cbranch_scc1 k_end")
    A.e(f"s_and_b32 s{sB}, s2, 1")
    A.e(f"s_mul_i32 s3, s{sB}, 40")
    A.e(f"s_load_dwordx2 s[{SX}:{SX+1}], s[0:1], 0")
    A.e(f"s_bfe_u32 s{sHG}, s2, 0x20003")
    A.e(f"s_lshr_b32 s{sT}, s{sHG}, 1")
    A.e(f"s_lshl_b32 s{sT}, s{sT}, 3")
    A.e(f"s_add_u32 s{sT}, s{sT}, s3")
    A.e(f"s_add_u32 s{sT}, s{sT}, 16")
    A.e(f"s_load_dwordx2 s[{SWK}:{SWK+1}], s[0:1], s{sT}")
    A.e(f"s_load_dwordx2 s[{SG}:{SG+1}], s[0:1], 80")
    A.e("s_add_u32 s3, s3, 8")
    A.e(f"s_load_dwordx2 s[6:7], s[0:1], s3")
    A.e("s_load_dwordx2 s[14:15], s[0:1], 104")
    A.e("s_load_dwordx2 s[8:9], s[0:1], 32")
    A.e("s_load_dwordx2 s[10:11], s[0:1], 72")
    A.e("s_load_dwordx2 s[12:13], s[0:1], 88")
    if prof:
        A.e("s_memrealtime s[96:97]")
        names.append("start")
    A.e("v_lshrrev_b32 v1, 6, v0")
    A.e("v_and_b32 v0, 63, v0")
    A.e(f"v_readfirstlane_b32 s{sW}, v1")
    A.c("mt = 8*((id&7)>>1) + (id>>5), hg = (id>>3)&3")
    A.e("s_bfe_u32 s3, s2, 0x20001")
    A.e("s_lshl_b32 s3, s3, 3")
    A.e(f"s_lshr_b32 s{sMT}, s2, 5")
    A.e(f"s_add_u32 s{sMT}, s{sMT}, s3")
    A.e(f"v_lshlrev_b32 v{vL16}, 4, v0")
    vXe, vXo, vW0, vW1, vWa, vWa4, vWa5, vXa = 104, 105, 106, 107, 108, 109, 110, 112
    vU, vU2, vTr, vXk, vGo, vPart, vRed = 116, 117, 120, 121, 125, 126, 127
    WF, XF, GF, KACC, RD = 192, 208, 224, 240, 128
    A.c("x source of DMA r (8 rows): (i>>3)*896 + (((i&7) ^ (4(r&1) + (i>>4)))*16)")
    A.e(f"v_lshrrev_b32 v{vT}, 4, v0")
    A.e(f"v_and_b32 v{vT2}, 7, v0")
    A.e(f"v_xor_b32 v{vT}, v{vT}, v{vT2}")
    A.e(f"v_lshlrev_b32 v{vT}, 4, v{vT}")
    A.e(f"v_lshrrev_b32 v{vT2}, 3, v0")
    A.e(f"v_mul_u32_u24 v{vT2}, 896, v{vT2}")
    A.e(f"v_add_u32 v{vXe}, v{vT}, v{vT2}")
    A.e(f"v_xor_b32 v{vXo}, 64, v{vXe}")
    A.e(f"v_lshrrev_b32 v{vGo}, 5, v0")
    A.e(f"v_lshlrev_b32 v{vGo}, 4, v{vGo}")
    A.c("x chunk w: global 64mt*896 + 128w, LDS XL + 8192w; the 32 rows of this block's K/V tile (half = hg&1) go first")
    A.e(f"s_mul_i32 s{sXg}, s{sMT}, {64*896}")
    A.e(f"s_lshl_b32 s3, s{sW}, 7")
    A.e(f"s_add_u32 s{sXg}, s{sXg}, s3")
    A.e(f"s_lshl_b32 s{sXl}, s{sW}, 13")
    A.e(f"s_add_u32 s{sXl}, s{sXl}, {XL}")
    A.e(f"s_and_b32 s{sT3}, s{sHG}, 1")
    A.e(f"s_mul_i32 s{sT}, s{sT3}, {32*896}")
    A.e(f"s_lshl_b32 s{sT2}, s{sT3}, 12")
    sXg1, sXl1, sXg2, sXl2 = 4, 5, 62, 63
    A.e(f"s_add_u32 s{sXg1}, s{sXg}, s{sT}")
    A.e(f"s_add_u32 s{sXl1}, s{sXl}, s{sT2}")
    A.e(f"s_sub_u32 s{sT}, {32*896}, s{sT}")
    A.e(f"s_sub_u32 s{sT2}, 4096, s{sT2}")
    A.e(f"s_add_u32 s{sXg2}, s{sXg}, s{sT}")
    A.e(f"s_add_u32 s{sXl2}, s{sXl}, s{sT2}")
    sKl, sKg, sGg = sCnt, sOst, sFlg
    A.e(f"s_lshl_b32 s{sKl}, s{sW}, 12")
    A.e(f"s_add_u32 s{sKl}, s{sKl}, {KVR}")
    A.e(f"s_mul_i32 s{sKg}, s{sW}, 3584")
    A.e(f"s_lshl_b32 s{sGg}, s{sW}, 7")
    A.e(f"s_mul_i32 s{sWl0}, s{sW}, 1792")
    A.e(f"s_mul_i32 s{sOld}, s{sHG}, 224")
    A.e(f"s_cmp_eq_u32 s{sW}, 7")
    A.e("s_waitcnt lgkmcnt(0)")
    A.e(f"s_mov_b32 s{SX+2}, {X_BYTES}")
    A.e(f"s_mov_b32 s{SX+3}, 0x20000")
    A.e("s_cbranch_scc1 k_nokv0")
    A.e(f"s_mov_b32 s{SWK+2}, {WK_BYTES}")
    A.e(f"s_mov_b32 s{SWK+3}, 0x20000")

    def x_dma(sg, sl, k):
        A.e(f"s_add_u32 m0, s{sl}, {1024*k}")
        A.e(f"s_add_u32 s{sT}, s{sg}, {7168*k}")
        A.vmem(f"buffer_load_dwordx4 v{vXo if k & 1 else vXe}, s[{SX}:{SX+3}], s{sT} offen lds", sg)

    for k in range(4):
        x_dma(sXg1, sXl1, k)
    A.e(f"s_mov_b32 m0, s{sKl}")
    A.e(f"s_mov_b32 s{SG+2}, 896")
    A.e(f"s_mov_b32 s{SG+3}, 0x20000")
    for u in range(4):
        A.vmem(f"buffer_load_dwordx4 v{vL16}, s[{SWK}:{SWK+3}], s{sKg} offen{boff(1024*u)} lds", "WK")
    for st in range(4):
        A.vmem(f"buffer_load_dwordx4 {v(GF+4*st,4)}, v{vGo}, s[{SG}:{SG+3}], s{sGg} offen{boff(32*st)}", "G")
    for k in range(4):
        x_dma(sXg2, sXl2, k)
    A.label("k_nokv0")
    if prof:
        A.e(f"s_mov_b32 s{sProf}, s96")
    A.srd(SWS, 14, 15, WS_USED)
    A.e(f"s_add_u32 s{SWQ}, s6, s{sOld}")
    A.e(f"s_addc_u32 s{SWQ+1}, s7, 0")
    A.e(f"s_sub_u32 s{SWQ+2}, {W_BYTES}, s{sOld}")
    A.e(f"s_mov_b32 s{SWQ+3}, 0x20000")
    A.c("seed word of the hand-off tag")
    A.e(f"v_mov_b32 v{vT}, 0")
    A.e(f"s_mov_b32 s3, {SEED_OFF}")
    A.vmem(f"buffer_load_dwordx2 v[{vP}:{vP+1}], v{vT}, s[{SWS}:{SWS+3}], s3 offen sc1", "SEED")
    A.c("W source: p = 64u+i, pos = p/14, k = (pos&~7) + 4(pos&1) + ((pos&7)>>1), (8w+k)*896 + (p%14)*16")
    for u, dst in ((0, vW0), (1, vW1)):
        A.e(f"v_add_u32 v{vT}, {64*u}, v0")
        A.e(f"v_mul_u32_u24 v{vT2}, 4682, v{vT}")
        A.e(f"v_lshrrev_b32 v{vT2}, 16, v{vT2}")
        A.e(f"v_mul_u32_u24 v{vU}, 14, v{vT2}")
        A.e(f"v_sub_u32 v{vT}, v{vT}, v{vU}")
        A.e(f"v_lshlrev_b32 v{vT}, 4, v{vT}")
        A.e(f"v_and_b32 v{vU}, 8, v{vT2}")
        A.e(f"v_and_b32 v{vU2}, 1, v{vT2}")
        A.e(f"v_lshl_add_u32 v{vU}, v{vU2}, 2, v{vU}")
        A.e(f"v_bfe_u32 v{vU2}, v{vT2}, 1, 2")
        A.e(f"v_add_u32 v{vU}, v{vU}, v{vU2}")
        A.e(f"v_lshl_add_u32 v{vU}, s{sW}, 3, v{vU}")
        A.e(f"v_mul_u32_u24 v{vU}, 896, v{vU}")
        A.e(f"v_add_u32 v{dst}, v{vU}, v{vT}")

    def wq_dma(c):
        base = WA + 14336 * c if c < 5 else KVR + 14336 * (c - 5)
        for u, src in ((0, vW0), (1, vW1)):
            A.e(f"s_add_u32 m0, s{sWl0}, {base + 1024*u}")
            if u == 0:
                A.e(f"s_mov_b32 s{sT}, {57344*c}")
            else:
                A.e("s_nop 0")
            A.vmem(f"buffer_load_dwordx4 v{src}, s[{SWQ}:{SWQ+3}], s{sT} offen lds", ("Q", c))

    for c in range(5):
        wq_dma(c)
    stamp("issued")
    A.c("W_k / W_v transposed read: KVR + 4096w + (8h + (i>>2))*56 + 32(g&1) + 8(i&3)")
    A.e(f"v_lshrrev_b32 v{vT}, 5, v0")
    A.e(f"v_bfe_u32 v{vTr}, v0, 2, 2")
    A.e(f"v_lshl_add_u32 v{vTr}, v{vT}, 3, v{vTr}")
    A.e(f"v_mul_u32_u24 v{vTr}, 56, v{vTr}")
    A.e(f"v_bfe_u32 v{vT2}, v0, 4, 1")
    A.e(f"v_lshlrev_b32 v{vT2}, 5, v{vT2}")
    A.e(f"v_and_b32 v{vU}, 3, v0")
    A.e(f"v_lshl_add_u32 v{vT2}, v{vU}, 3, v{vT2}")
    A.e(f"v_add_u32 v{vTr}, v{vTr}, v{vT2}")
    A.e(f"v_add_u32 v{vTr}, s{sKl}, v{vTr}")
    A.e(f"v_add_u32 v{vPart}, s{sKl}, v{vL16}")
    A.c("x fragment read: q*128 + (((2st+h) ^ ((q>>1)&7))*16), q = 32*half + (l&31)")
    A.e(f"v_and_b32 v{vU}, 31, v0")
    A.e(f"v_bfe_u32 v{vU2}, v0, 1, 3")
    A.e(f"v_xor_b32 v{vU2}, v{vU2}, v{vT}")
    A.e(f"v_lshlrev_b32 v{vU2}, 4, v{vU2}")
    A.e(f"v_lshl_add_u32 v{vU2}, v{vU}, 7, v{vU2}")
    A.e(f"v_add_u32 v{vXk}, s{sXl1}, v{vU2}")
    for st in range(1, 4):
        A.e(f"v_xor_b32 v{vXk+st}, {st << 5}, v{vXk}")
    A.e(f"s_and_b32 s{sQT}, s{sW}, 1")
    A.e(f"s_lshr_b32 s{sHL}, s{sW}, 1")
    A.e(f"s_and_b32 s{sCT}, s{sW}, 3")
    A.e(f"s_lshr_b32 s{sBB}, s{sW}, 2")
    A.e(f"s_lshl_b32 s3, s{sQT}, 12")
    A.e(f"s_add_u32 s3, s3, {XL}")
    A.e(f"v_add_u32 v{vXa}, s3, v{vU2}")
    for st in range(1, 4):
        A.e(f"v_xor_b32 v{vXa+st}, {st << 5}, v{vXa}")
    A.c("W_q transposed read: (8h + 2(i>>2))*224 + 56hl + 32(g&1) + 8(i&3)")
    A.e(f"v_bfe_u32 v{vU}, v0, 2, 2")
    A.e(f"v_lshlrev_b32 v{vU2}, 1, v{vU}")
    A.e(f"v_lshl_add_u32 v{vU2}, v{vT}, 3, v{vU2}")
    A.e(f"v_mul_u32_u24 v{vWa}, 224, v{vU2}")
    A.e(f"v_add_u32 v{vWa}, v{vWa}, v{vT2}")
    A.e(f"s_mul_i32 s3, s{sHL}, 56")
    A.e(f"v_add_u32 v{vWa}, s3, v{vWa}")
    A.e(f"v_add_u32 v{vWa4}, {WA + 4*14336}, v{vWa}")
    A.e(f"v_add_u32 v{vWa5}, {KVR}, v{vWa}")
    A.c("Wo transposed read: WoL + (4h + (i>>2))*64 + 32(g&1) + 8(i&3); variant with h = 0 for the padded rows")
    A.e(f"s_mul_i32 s{sWoL}, s{sW}, 7168")
    A.e(f"s_add_u32 s{sWoL}, s{sWoL}, {WO_L}")
    A.e(f"v_lshl_add_u32 v{vWoA0}, v{vU}, 6, v{vT2}")
    A.e(f"v_add_u32 v{vWoA0}, s{sWoL}, v{vWoA0}")
    A.e(f"v_lshl_add_u32 v{vWoA}, v{vT}, 8, v{vWoA0}")
    A.c("reducer q = w reads registers 4q..4q+3 of every partial")
    A.e(f"s_lshl_b32 s3, s{sW}, 10")
    A.e(f"s_add_u32 s3, s3, {KVR}")
    A.e(f"v_add_u32 v{vRed}, s3, v{vL16}")
    A.e(f"v_and_b32 v{vT}, 31, v0")
    A.e(f"v_cmp_eq_u32 vcc, 28, v{vT}")
    A.e(f"s_cmp_eq_u32 s{sW}, 7")
    A.e("s_cbranch_scc1 k_nokv1")
    A.wait(vm=["G"])
    stamp("crit landed")
    for st in range(4):
        for u in range(2):
            A.e(f"ds_read_b64_tr_b16 {v(WF+4*st+2*u,2)}, v{vTr}{doff(896*st+224*u)}")
        A.e(f"ds_read_b128 {v(XF+4*st,4)}, v{vXk+st}")
    A.e(f"s_cmp_lt_u32 s{sHG}, 2")
    A.e("s_waitcnt lgkmcnt(0)")
    A.e("s_cbranch_scc0 k_vjob")
    A.c("column 28 of the weight fragment carries gate_w, so row 28 of the K product is the gate logit")
    for r in range(16):
        A.e(f"v_cndmask_b32 v{WF+r}, v{WF+r}, v{GF+r}, vcc")
    A.e("s_nop 0")
    for st in range(4):
        A.e(mfma32(KACC, WF + 4 * st, XF + 4 * st, None if st == 0 else KACC))
    A.e("s_branch k_part")
    A.label("k_vjob")
    for st in range(4):
        A.e(mfma32(KACC, XF + 4 * st, WF + 4 * st, None if st == 0 else KACC))
    A.label("k_part")
    A.e("s_nop 7")
    A.e("s_nop 3")
    for q in range(4):
        A.e(f"ds_write_b128 v{vPart}, {v(KACC+4*q,4)}{doff(1024*q)}")
    A.e("s_waitcnt lgkmcnt(0)")
    A.label("k_nokv1")
    A.e("s_barrier")
    stamp("partials")
    A.e(f"s_cmp_lt_u32 s{sW}, 4")
    A.e("s_cbranch_scc0 k_nored0")
    for p in range(7):
        A.e(f"ds_read_b128 {v(RD+4*p,4)}, v{vRed}{doff(4096*p)}")
    A.label("k_nored0")
    A.c("K/V image offset: b*262144 + (2mt+half)*4096 + (2kv + (w>>1))*1024 + 8(w&1) + lane*16")
    A.e(f"s_lshl_b32 s3, s{sB}, 18")
    A.e(f"s_lshl_b32 s{sT}, s{sMT}, 1")
    A.e(f"s_add_u32 s{sT}, s{sT}, s{sT3}")
    A.e(f"s_lshl_b32 s{sT2}, s{sT}, 12")
    A.e(f"s_add_u32 s3, s3, s{sT2}")
    A.e(f"s_lshl_b32 s{sT}, s{sT}, 7")
    A.e(f"s_add_u32 s{sKg}, s{sT}, {G_OFF}")
    A.e(f"s_lshr_b32 s{sT2}, s{sHG}, 1")
    A.e(f"s_lshl_b32 s{sT2}, s{sT2}, 11")
    A.e(f"s_add_u32 s3, s3, s{sT2}")
    A.e(f"s_bfe_u32 s{sT2}, s{sW}, 0x10001")
    A.e(f"s_lshl_b32 s{sT2}, s{sT2}, 10")
    A.e(f"s_add_u32 s3, s3, s{sT2}")
    A.e(f"s_and_b32 s{sT2}, s{sW}, 1")
    A.e(f"s_lshl_b32 s{sT2}, s{sT2}, 3")
    A.e(f"s_add_u32 s{sGg}, s3, s{sT2}")
    A.e(f"v_and_b32 v{vT}, 31, v0")
    A.e(f"s_cmp_lt_u32 s{sW}, 4")
    A.e("s_waitcnt lgkmcnt(0)")
    A.e("s_barrier")
    A.e("s_cbranch_scc0 k_nored1")
    for r in range(4):
        A.e(f"v_add_f32 v{RD+r}, v{RD+r}, v{RD+4+r}")
        A.e(f"v_add_f32 v{RD+8+r}, v{RD+8+r}, v{RD+12+r}")
        A.e(f"v_add_f32 v{RD+16+r}, v{RD+16+r}, v{RD+20+r}")
    for r in range(4):
        A.e(f"v_add_f32 v{RD+r}, v{RD+r}, v{RD+8+r}")
        A.e(f"v_add_f32 v{RD+16+r}, v{RD+16+r}, v{RD+24+r}")
    for r in range(4):
        A.e(f"v_add_f32 v{RD+r}, v{RD+r}, v{RD+16+r}")
    vKo = RD + 4
    A.e(f"v_cvt_pk_bf16_f32 v{vKo}, v{RD}, v{RD+1}")
    A.e(f"v_cvt_pk_bf16_f32 v{vKo+1}, v{RD+2}, v{RD+3}")
    A.e(f"s_cmp_lt_u32 s{sHG}, 2")
    A.e("s_cbranch_scc0 k_vpad")
    A.e(f"s_cmp_eq_u32 s{sW}, 3")
    A.e("s_cbranch_scc0 k_kvst")
    A.c("K, registers 12..15: rows 28..31 live in the upper half-wave")
    A.e("s_mov_b32 exec_lo, 0")
    A.e(f"v_mov_b32 v{vKo}, 0")
    A.e(f"v_mov_b32 v{vKo+1}, 0")
    A.e("s_mov_b32 exec_lo, -1")
    A.e("s_branch k_kvst")
    A.label("k_vpad")
    A.e(f"v_mov_b32 v{RD+8}, 0")
    A.e(f"v_mov_b32 v{RD+9}, 0x3f803f80")
    A.e(f"v_cmp_eq_u32 vcc, 28, v{vT}")
    A.e("s_nop 1")
    A.e(f"v_cndmask_b32 v{RD+8}, v{RD+8}, v{RD+9}, vcc")
    A.e(f"v_cmp_gt_u32 vcc, 28, v{vT}")
    A.e("s_nop 1")
    A.e(f"v_cndmask_b32 v{vKo}, v{RD+8}, v{vKo}, vcc")
    A.e(f"v_cndmask_b32 v{vKo+1}, v{RD+8}, v{vKo+1}, vcc")
    A.label("k_kvst")
    A.e(f"buffer_store_dwordx2 v[{vKo}:{vKo+1}], v{vL16}, s[{SWS}:{SWS+3}], s{sGg} offen sc1")
    A.c("gate values: branch A, K tiles, wave 3, upper half-wave")
    A.e(f"s_cmp_eq_u32 s{sW}, 3")
    A.e("s_cbranch_scc0 k_nored1")
    A.e(f"s_lshl_b32 s3, s{sB}, 2")
    A.e(f"s_add_u32 s3, s3, s{sHG}")
    A.e("s_cmp_lt_u32 s3, 2")
    A.e("s_cbranch_scc0 k_nored1")
    A.e(f"v_mul_f32 v{RD+8}, {fbits(-LOG2E)}, v{RD}")
    A.e(f"v_exp_f32 v{RD+8}, v{RD+8}")
    A.e(f"v_lshlrev_b32 v{RD+9}, 2, v{vT}")
    A.e(f"v_add_f32 v{RD+8}, 1.0, v{RD+8}")
    A.e(f"v_rcp_f32 v{RD+8}, v{RD+8}")
    A.e("s_mov_b32 exec_lo, 0")
    A.e(f"buffer_store_dword v{RD+8}, v{RD+9}, s[{SWS}:{SWS+3}], s{sKg} offen sc1")
    A.e("s_mov_b32 exec_lo, -1")
    A.label("k_nored1")
    stamp("kv stored")
    for c in (5, 6):
        wq_dma(c)
    A.e("s_waitcnt vmcnt(4)")
    A.vm.q = A.vm.q[-4:]
    A.e("s_barrier")
    stamp("drained")
    A.c("publish the K/V tile: tag = seed + step, one 8-byte flag per replica")
    A.e(f"v_readfirstlane_b32 s{sN}, v{vP}")
    A.e(f"v_readfirstlane_b32 s{sN+1}, v{vP+1}")
    A.e(f"s_add_u32 s{sN}, s{sN}, {hex(TAG_LO)}")
    A.e(f"s_addc_u32 s{sN+1}, s{sN+1}, {hex(TAG_HI)}")
    sKF = sCnt
    A.e(f"s_mul_i32 s{sKF}, s{sB}, {R*1024}")
    A.e(f"s_add_u32 s{sKF}, s{sKF}, {KVF_OFF}")
    A.e(f"s_cmp_eq_u32 s{sW}, 0")
    A.e("s_cbranch_scc0 k_nopub")
    A.e(f"s_lshl_b32 s3, s{sMT}, 2")
    A.e(f"s_add_u32 s3, s3, s{sHG}")
    A.e("s_lshl_b32 s3, s3, 3")
    A.e(f"s_add_u32 s3, s3, s{sKF}")
    A.e(f"v_lshlrev_b32 v{vT}, 10, v0")
    A.e(f"v_mov_b32 v{vP}, s{sN}")
    A.e(f"v_mov_b32 v{vP+1}, s{sN+1}")
    A.e(f"s_mov_b32 exec_lo, {hex((1 << R) - 1 if R < 32 else 0xFFFFFFFF)}")
    A.e(f"s_mov_b32 exec_hi, {hex((1 << (R - 32)) - 1 if R > 32 else 0)}")
    A.e(f"buffer_store_dwordx2 v[{vP}:{vP+1}], v{vT}, s[{SWS}:{SWS+3}], s3 offen sc1")
    A.e("s_mov_b64 exec, -1")
    A.label("k_nopub")
    A.c("replica polled by this block")
    A.e(f"s_lshr_b32 s3, s2, 1")
    A.e(f"s_and_b32 s3, s3, {R-1}")
    A.e("s_lshl_b32 s3, s3, 10")
    A.e(f"s_add_u32 s{sKF}, s{sKF}, s3")
    A.e(f"s_lshl_b32 s3, s{sB}, 18")
    A.e(f"s_add_u32 s{SKV}, s14, s3")
    A.e(f"s_addc_u32 s{SKV+1}, s15, 0")
    A.e(f"s_mov_b32 s{SKV+2}, 0x40000")
    A.e(f"s_mov_b32 s{SKV+3}, 0x20000")
    A.e(f"s_cmp_eq_u32 s{sBB}, 0")
    A.e(f"s_cselect_b32 s{SWO}, s8, s10")
    A.e(f"s_cselect_b32 s{SWO+1}, s9, s11")
    A.e(f"s_mov_b32 s{SWO+2}, {W_BYTES}")
    A.e(f"s_mov_b32 s{SWO+3}, 0x20000")
    A.srd(SOUT, 12, 13, X_BYTES)
    A.e(f"s_lshl_b32 s{sKVL}, s{sW}, 12")
    A.e(f"s_mul_i32 s{sWoG}, s{sHG}, 224")
    A.e(f"s_lshl_b32 s3, s{sCT}, 6")
    A.e(f"s_add_u32 s{sWoG}, s{sWoG}, s3")
    A.e(f"s_mov_b32 s{sPass}, 0")
    A.c("o image of this wave: O_OFF + ((mt*2+qt)*2+b)*32768 + head*2048")
    A.e(f"s_lshl_b32 s3, s{sMT}, 1")
    A.e(f"s_add_u32 s3, s3, s{sQT}")
    A.e("s_lshl_b32 s3, s3, 1")
    A.e(f"s_add_u32 s3, s3, s{sB}")
    A.e("s_lshl_b32 s3, s3, 15")
    A.e(f"s_lshl_b32 s{sT}, s{sHG}, 2")
    A.e(f"s_add_u32 s{sT}, s{sT}, s{sHL}")
    A.e(f"s_lshl_b32 s{sT}, s{sT}, 11")
    A.e(f"s_add_u32 s3, s3, s{sT}")
    A.e(f"s_add_u32 s{sOst}, s3, {O_OFF}")
    A.c("flag line of this row block; o images consumed: q-tile b of block mt")
    A.e(f"s_lshl_b32 s{sFlg}, s{sMT}, 7")
    A.e(f"s_add_u32 s{sFlg}, s{sFlg}, {FLAG_OFF}")
    A.e(f"s_lshl_b32 s3, s{sMT}, 1")
    A.e(f"s_add_u32 s3, s3, s{sB}")
    A.e("s_lshl_b32 s3, s3, 16")
    A.e(f"s_add_u32 s{sOld}, s3, {O_OFF}")
    A.e(f"v_add_u32 v{vL16b}, 0x10000, v{vL16}")
    for r in range(16):
        A.e(f"v_mov_b32 v{vC+r}, 0")

    def kv_dma(chunk, k):
        A.vmem(f"buffer_load_dwordx4 v{vL16}, s[{SKV}:{SKV+3}], s{sT} offen{boff(1024*k)} sc1 lds", ("KV", chunk))

    def kv_m0(chunk):
        A.e(f"s_add_u32 m0, s{sKVL}, {(chunk % 3) * 32768}")
        A.e(f"s_add_u32 s{sT}, s{sKVL}, {chunk * 32768}")

    QB = [128, 160]
    vPoll = vK

    def q_mfma(c):
        b0 = QB[c & 1]
        for st in range(4):
            A.e(mfma32(vS0, b0 + 4 * st, b0 + 16 + 4 * st, None if (c == 0 and st == 0) else vS0))

    def q_reads(c):
        b0 = QB[c & 1]
        wb, wo_ = (vWa, 14336 * c) if c < 4 else (vWa4, 0) if c == 4 else (vWa5, 14336 * (c - 5))
        for st in range(4):
            for u in range(2):
                A.ds(f"ds_read_b64_tr_b16 {v(b0+4*st+2*u,2)}, v{wb}{doff(wo_+(16*st+u)*224)}", ("q", c))
            A.ds(f"ds_read_b128 {v(b0+16+4*st,4)}, v{vXa+st}{doff(8192*c)}", ("q", c))

    def poll_load():
        A.vmem(f"buffer_load_dwordx4 {v(vPoll,4)}, v{vL16}, s[{SWS}:{SWS+3}], s{sKF} offen sc1", "POLL")

    for c in range(7):
        if c == 5:
            A.wait0(lg=False)
            A.e("s_barrier")
        if c == o["pollc"]:
            A.e(f"s_cmp_eq_u32 s{sW}, 0")
            A.e("s_cbranch_scc0 k_nopoll0")
            poll_load()
            A.label("k_nopoll0")
        q_reads(c)
        if c > 0:
            A.wait(lg=[("q", c - 1)])
            q_mfma(c - 1)
    A.wait0(vm=False)
    q_mfma(6)
    stamp("qproj")
    A.c("all 128 K/V tiles of this branch must be published before the first tile is fetched")
    A.e(f"s_cmp_eq_u32 s{sW}, 0")
    A.e("s_cbranch_scc0 k_kvseen")
    A.e(f"s_mov_b32 s{sT2}, 0")
    A.label("k_kvpoll")
    A.e("s_waitcnt vmcnt(0)")
    A.e(f"v_cmp_ne_u64 vcc, s[{sN}:{sN+1}], v[{vPoll}:{vPoll+1}]")
    A.e(f"v_cmp_ne_u64 s[62:63], s[{sN}:{sN+1}], v[{vPoll+2}:{vPoll+3}]")
    A.e("s_or_b64 vcc, vcc, s[62:63]")
    A.e("s_cbranch_vccz k_kvseen")
    A.e(f"buffer_load_dwordx4 {v(vPoll,4)}, v{vL16}, s[{SWS}:{SWS+3}], s{sKF} offen sc1")
    A.e(f"s_add_u32 s{sT2}, s{sT2}, 1")
    A.e(f"s_cmp_lt_u32 s{sT2}, 0x40000")
    A.e("s_cbranch_scc1 k_kvpoll")
    A.label("k_kvseen")
    A.wait0()
    A.e("s_barrier")
    stamp("kv seen")
    for ch in range(2):
        kv_m0(ch)
        A.e("s_nop 0")
        for k in range(4):
            kv_dma(ch, k)
    sc = (28 ** -0.5) * LOG2E
    A.e(f"s_mov_b32 s{sT2}, {fbits(sc)}")
    for r in range(16):
        A.e(f"v_mul_f32 v{vS0+r}, s{sT2}, v{vS0+r}")
    for k in range(8):
        A.e(f"v_cvt_pk_bf16_f32 v{vQ+k}, v{vS0+2*k}, v{vS0+2*k+1}")
    A.e("s_mov_b32 exec_lo, 0")
    A.e(f"v_mov_b32 v{vQ+6}, 0")
    A.e(f"v_mov_b32 v{vQ+7}, 0")
    A.e("s_mov_b32 exec_lo, -1")

    def ring(t, part):
        slot = (t >> 3) % 3
        off = slot * 32768 + (t & 7) * 4096 + part * 1024
        return (vL16, off) if off < 65536 else (vL16b, off - 65536)

    def rd(dst, t, part):
        base, off = ring(t, part)
        A.ds(f"ds_read_b128 {v(dst,4)}, v{base}{doff(off)}", (t, part))

    def wo_dma(r, u):
        A.e(f"s_add_u32 m0, s{sWoL}, {1024*u}")
        A.e(f"s_add_u32 s{sT2}, s{sWoG}, {(112*r+16*u)*896}")
        return (f"buffer_load_dwordx4 v{vWoS}, s[{SWO}:{SWO+3}], s{sT2} offen lds", ("WO", r))

    def wo_rd(r, n):
        hd, s_, u = n >> 2, (n >> 1) & 1, n & 1
        base = vWoA0 if (s_ == 1 and u == 1) else vWoA
        dst = WO + 8 * (4 * r + hd) + 4 * s_ + 2 * u
        A.ds(f"ds_read_b64_tr_b16 {v(dst,2)}, v{base}{doff((28*hd+16*s_+8*u)*64)}", ("wo", r))

    vWoS = 104
    A.c("Wo staging source: (i>>2)*896 + (i&3)*16")
    A.e(f"v_lshrrev_b32 v{vT}, 2, v0")
    A.e(f"v_mul_u32_u24 v{vT}, 896, v{vT}")
    A.e(f"v_and_b32 v{vT2}, 3, v0")
    A.e(f"v_lshl_add_u32 v{vWoS}, v{vT2}, 4, v{vT}")

    A.label("k_attn")
    A.wait0()
    A.e("s_barrier")
    stamp("attn start", cyc=0)
    rd(vK, 0, 0); rd(vK + 4, 0, 1)
    A.wait(lg=[(0, 1)])
    A.e(mfma32(vS0, vK, vQ, vC))
    A.e(mfma32(vS0, vK + 4, vQ + 4, vS0))
    rd(vK, 1, 0); rd(vK + 4, 1, 1); rd(vV, 0, 2)
    A.e("s_nop 7")
    A.e("s_nop 3")
    for t in range(64):
        n, i = t >> 3, t & 7
        Sc = vS0 if t % 2 == 0 else vS1
        Sn = vS1 if t % 2 == 0 else vS0
        E = lambda r: A.e(f"v_exp_f32 v{Sc+r}, v{Sc+r}")
        C = lambda k: A.e(f"v_cvt_pk_bf16_f32 v{vP+k}, v{Sc+2*k}, v{Sc+2*k+1}")
        kvp = (n < 6 and i < 4)
        wod = []
        if n % 2 == 0 and i >= 4:
            wod = [2 * (i - 4), 2 * (i - 4) + 1] if i < 7 else [6]
        wor = []
        if n % 2 == 0 and n >= 2 and i < 4:
            wor = list(range(4 * i, 4 * i + 4))
        if o["prio"] and i % 2 == 0:
            A.e(f"s_setprio {3 - i // 2}")
        if kvp and i == 0:
            kv_m0(n + 2)
        tags = []
        if t < 63: tags.append((t + 1, 0))
        if t > 0: tags.append((t - 1, 3))
        A.wait(lg=tags)
        if t < 63:
            A.e(mfma32(Sn, vK, vQ, vC))
        if t + 2 < 64:
            rd(vK, t + 2, 0)
        E(0); E(1); E(2); C(0); E(3)
        if t > 0:
            A.e(mfma32(vO, vV + 4, vP + 4, vO))
        rd(vV + 4, t, 3)
        if kvp:
            kv_dma(n + 2, i)
        pend = None
        if wod:
            A.wait(lg=[("wo", n // 2 - 1)])
            pend = wo_dma(n // 2, wod[0])
        E(4)
        if pend:
            A.vmem(*pend)
        C(1); E(5); E(6); C(2); E(7)
        tags = [(t, 2)]
        if t < 63: tags.append((t + 1, 1))
        A.wait(lg=tags)
        if t < 63:
            A.e(mfma32(Sn, vK + 4, vQ + 4, Sn))
        if t + 2 < 64:
            rd(vK + 4, t + 2, 1)
        pend = None
        if len(wod) > 1:
            pend = wo_dma(n // 2, wod[1])
        E(8)
        if pend:
            A.vmem(*pend)
        C(3); E(9); E(10); C(4); E(11)
        A.e(mfma32(vO, vV, vP, None if t == 0 else vO))
        if t + 1 < 64:
            rd(vV, t + 1, 2)
        for x in wor:
            wo_rd(n // 2 - 1, x)
        E(12); C(5); E(13); E(14); E(15); C(6); C(7)
        if i == 7 and n < 6:
            a = A.vm.need(("KV", n + 2))
            b = A.lg.need((t, 3))
            A.e(waitcnt(a, b))
            A.e("s_barrier")
    A.wait(lg=[(63, 3)])
    A.e("s_nop 1")
    A.e(mfma32(vO, vV + 4, vP + 4, vO))
    if o["prio"]:
        A.e("s_setprio 0")
    stamp("attn end", cyc=1)

    A.e("s_nop 7")
    A.e("s_nop 3")
    vLs, vLt, vSum = TMP + 8, TMP + 9, TMP + 10
    A.e(f"v_mov_b32 v{vLs}, v{vO+12}")
    A.e(f"v_mov_b32 v{vLt}, v{vO+12}")
    A.e(f"v_add_f32 v{vSum}, v{vO}, v{vO+1}")
    A.e(f"v_add_f32 v{vSum}, v{vSum}, v{vO+2}")
    A.e(f"v_permlane32_swap_b32 v{vLs}, v{vLt}")
    for r in range(3, 16):
        A.e(f"v_add_f32 v{vSum}, v{vSum}, v{vO+r}")
    A.e(f"v_rcp_f32 v{vLs}, v{vLt}")
    A.c("row sum must lie in [2^-24, 2^100] and every accumulator must be finite, else redo with the true row maximum")
    A.e(f"s_mov_b32 s{sT}, 0x207")
    A.e(f"v_cmp_class_f32 vcc, v{vSum}, s{sT}")
    A.e(f"s_mov_b32 s{sT}, {fbits(2.0**-24)}")
    A.e(f"v_cmp_nle_f32 s[62:63], s{sT}, v{vLt}")
    A.e("s_or_b64 vcc, vcc, s[62:63]")
    A.e(f"s_mov_b32 s{sT}, {fbits(2.0**100)}")
    A.e(f"v_cmp_nge_f32 s[62:63], s{sT}, v{vLt}")
    A.e("s_or_b64 vcc, vcc, s[62:63]")
    A.e("s_cmp_lg_u64 vcc, 0")
    A.e(f"s_cselect_b32 s{sT}, 1, 0")
    A.e(f"s_cmp_eq_u32 s{sPass}, 0")
    A.e(f"s_cselect_b32 s{sT}, s{sT}, 0")
    A.e(f"v_mov_b32 v{vT}, s{sT}")
    A.e(f"s_lshl_b32 s3, s{sW}, 2")
    A.e(f"s_add_u32 s3, s3, {FAILW}")
    A.e(f"v_mov_b32 v{vT2}, s3")
    A.e("s_mov_b64 exec, 1")
    A.e(f"ds_write_b32 v{vT2}, v{vT}")
    A.e("s_mov_b64 exec, -1")
    for r in range(16):
        A.e(f"v_mul_f32 v{vO+r}, v{vO+r}, v{vLs}")
    for k in range(8):
        A.e(f"v_cvt_pk_bf16_f32 v{vP+k}, v{vO+2*k}, v{vO+2*k+1}")
    A.e("s_mov_b32 exec_lo, 0")
    A.e(f"v_mov_b32 v{vP+6}, 0")
    A.e(f"v_mov_b32 v{vP+7}, 0")
    A.e("s_mov_b32 exec_lo, -1")
    A.e(f"buffer_store_dwordx4 {v(vP,4)}, v{vL16}, s[{SWS}:{SWS+3}], s{sOst} offen sc1")
    A.e(f"buffer_store_dwordx4 {v(vP+4,4)}, v{vL16}, s[{SWS}:{SWS+3}], s{sOst} offen offset:1024 sc1")
    A.e(f"v_and_b32 v{vT}, 7, v0")
    A.e(f"v_lshlrev_b32 v{vT}, 2, v{vT}")
    A.e(f"v_add_u32 v{vT2}, {FAILW}, v{vT}")
    A.e(f"v_lshlrev_b32 v{vT}, 1, v{vT}")
    A.e("s_waitcnt lgkmcnt(0)")
    A.e("s_barrier")
    A.e(f"ds_read_b32 v{vT2}, v{vT2}")
    A.e("s_waitcnt vmcnt(0) lgkmcnt(0)")
    A.vm.drain(); A.lg.drain()
    A.e(f"v_cmp_ne_u32 vcc, 0, v{vT2}")
    A.e("s_cbranch_vccnz k_fallback")
    A.e("s_barrier")
    stamp("norm+drain")
    A.c("publish: one 8-byte tag per member b*4 + hg")
    A.e(f"s_cmp_eq_u32 s{sW}, 0")
    A.e("s_cbranch_scc0 k_noflag")
    A.e(f"s_lshl_b32 s3, s{sB}, 2")
    A.e(f"s_add_u32 s3, s3, s{sHG}")
    A.e("s_lshl_b32 s3, s3, 3")
    A.e(f"s_add_u32 s3, s3, s{sFlg}")
    A.e(f"v_mov_b32 v{vK}, s{sN}")
    A.e(f"v_mov_b32 v{vK+1}, s{sN+1}")
    A.e(f"v_mov_b32 v{TMP}, 0")
    A.e("s_mov_b64 exec, 1")
    A.e(f"buffer_store_dwordx2 v[{vK}:{vK+1}], v{TMP}, s[{SWS}:{SWS+3}], s3 offen sc1")
    A.e("s_mov_b64 exec, -1")
    A.label("k_noflag")
    for x in range(16):
        wo_rd(3, x)
    A.e(f"s_cmp_eq_u32 s{sW}, 0")
    A.e("s_cbranch_scc0 k_nopoll")
    A.e(f"s_mov_b32 s{sCnt}, 0")
    A.label("k_poll")
    A.e(f"buffer_load_dwordx2 v[{vK+2}:{vK+3}], v{vT}, s[{SWS}:{SWS+3}], s{sFlg} offen sc1")
    A.e(f"s_add_u32 s{sCnt}, s{sCnt}, 1")
    A.e("s_waitcnt vmcnt(0)")
    A.e(f"v_cmp_ne_u64 vcc, s[{sN}:{sN+1}], v[{vK+2}:{vK+3}]")
    A.e("s_cbranch_vccz k_pollok")
    A.e(f"s_cmp_lt_u32 s{sCnt}, 0x40000")
    A.e("s_cbranch_scc1 k_poll")
    A.label("k_pollok")
    A.c("every block has read the seed by now (each member passed its K/V wait): block 0 advances it to this launch's tag")
    A.e("s_cmp_eq_u32 s2, 0")
    A.e("s_cbranch_scc0 k_nopoll")
    A.e(f"s_mov_b32 s3, {SEED_OFF}")
    A.e("s_mov_b64 exec, 1")
    A.e(f"buffer_store_dwordx2 v[{vK}:{vK+1}], v{TMP}, s[{SWS}:{SWS+3}], s3 offen sc1")
    A.e("s_mov_b64 exec, -1")
    A.label("k_nopoll")
    A.e("s_barrier")
    stamp("poll")
    A.c("o fragments: wave loads branch bb, head 4*stage + ct; LDS image [bb][head][s][lane]")
    A.e(f"s_lshl_b32 s3, s{sBB}, 15")
    A.e(f"s_lshl_b32 s{sT}, s{sCT}, 11")
    A.e(f"s_add_u32 s3, s3, s{sT}")
    A.e(f"s_add_u32 s{sT}, s3, s{sOld}")
    for st in range(4):
        A.e(f"s_add_u32 m0, s3, {8192*st}")
        A.e(f"s_add_u32 s{sT2}, s{sT}, {8192*st}")
        for k in range(2):
            A.vmem(f"buffer_load_dwordx4 v{vL16}, s[{SWS}:{SWS+3}], s{sT2} offen{boff(1024*k)} sc1 lds", ("O", st))
    A.c("gate value of the output rows: g[64mt + 32b + (l&31)]")
    A.e(f"v_and_b32 v{vT}, 31, v0")
    A.e(f"v_lshlrev_b32 v{vT}, 2, v{vT}")
    A.e(f"s_lshl_b32 s3, s{sMT}, 8")
    A.e(f"s_lshl_b32 s{sT}, s{sB}, 7")
    A.e(f"s_add_u32 s3, s3, s{sT}")
    A.e(f"s_add_u32 s3, s3, {G_OFF}")
    A.vmem(f"buffer_load_dword v{vG}, v{vT}, s[{SWS}:{SWS+3}], s3 offen sc1", "g")
    vOb = TMP + 11
    A.e(f"s_lshl_b32 s3, s{sBB}, 15")
    A.e(f"v_add_u32 v{vOb}, s3, v{vL16}")
    ACC = vC
    OB = [16, 48]

    def o_mfma(st):
        b0 = OB[st & 1]
        for hd in range(4):
            for s_ in range(2):
                H = 4 * st + hd
                A.e(mfma32(ACC, WO + 8 * H + 4 * s_, b0 + 8 * hd + 4 * s_, None if (st == 0 and hd == 0 and s_ == 0) else ACC))
    for st in range(4):
        A.wait(vm=[("O", st)])
        A.e("s_barrier")
        b0 = OB[st & 1]
        for hd in range(4):
            for s_ in range(2):
                A.ds(f"ds_read_b128 {v(b0+8*hd+4*s_,4)}, v{vOb}{doff((4*st+hd)*2048+s_*1024)}", ("ob", st))
        if st > 0:
            o_mfma(st - 1)
        A.wait(lg=[("ob", st)])
    o_mfma(3)
    A.c("exchange halves with the wave of the other branch")
    A.e(f"s_lshl_b32 s3, s{sW}, 11")
    A.e(f"s_add_u32 s3, s3, {XCH}")
    A.e(f"v_add_u32 v{vT}, s3, v{vL16}")
    A.e(f"s_xor_b32 s3, s{sW}, 4")
    A.e("s_lshl_b32 s3, s3, 11")
    A.e(f"s_add_u32 s3, s3, {XCH}")
    A.e(f"v_add_u32 v{vT2}, s3, v{vL16}")
    A.c("output offset: (64mt + 32b + (l&31))*896 + (112hg + 32ct + 16bb + 8h)*2")
    vOut = TMP + 12
    A.e(f"v_and_b32 v{vOut}, 31, v0")
    A.e(f"v_mul_u32_u24 v{vOut}, 896, v{vOut}")
    A.e(f"v_lshrrev_b32 v{TMP}, 5, v0")
    A.e(f"v_lshl_add_u32 v{vOut}, v{TMP}, 4, v{vOut}")
    A.e(f"s_lshl_b32 s3, s{sMT}, 1")
    A.e(f"s_add_u32 s3, s3, s{sB}")
    A.e(f"s_mul_i32 s3, s3, {32*896}")
    A.e(f"s_lshl_b32 s{sT}, s{sBB}, 5")
    A.e(f"s_add_u32 s3, s3, s{sT}")
    A.e(f"s_add_u32 s{sT}, s3, s{sWoG}")
    A.c("scale: g for branch A, 1 - g for branch B")
    A.wait(vm=["g"])
    A.e(f"v_sub_f32 v{TMP+1}, 1.0, v{vG}")
    A.e(f"s_cmp_eq_u32 s{sBB}, 0")
    A.e("s_cselect_b64 vcc, -1, 0")
    A.e(f"v_cndmask_b32 v{vG}, v{TMP+1}, v{vG}, vcc")
    for r in range(16):
        A.e(f"v_mul_f32 v{ACC+r}, v{ACC+r}, v{vG}")
    A.e(f"s_cmp_eq_u32 s{sBB}, 0")
    A.e("s_cbranch_scc0 k_xb")
    A.e(f"ds_write_b128 v{vT}, {v(ACC+8,4)}")
    A.e(f"ds_write_b128 v{vT}, {v(ACC+12,4)} offset:1024")
    for r in range(8):
        A.e(f"v_mov_b32 v{16+r}, v{ACC+r}")
    A.e("s_branch k_xj")
    A.label("k_xb")
    A.e(f"ds_write_b128 v{vT}, {v(ACC,4)}")
    A.e(f"ds_write_b128 v{vT}, {v(ACC+4,4)} offset:1024")
    for r in range(8):
        A.e(f"v_mov_b32 v{16+r}, v{ACC+8+r}")
    A.label("k_xj")
    A.e("s_waitcnt lgkmcnt(0)")
    A.e("s_barrier")
    A.e(f"ds_read_b128 v[24:27], v{vT2}")
    A.e(f"ds_read_b128 v[28:31], v{vT2} offset:1024")
    A.e("s_waitcnt lgkmcnt(0)")
    for r in range(8):
        A.e(f"v_add_f32 v{16+r}, v{16+r}, v{24+r}")
    for k in range(4):
        A.e(f"v_cvt_pk_bf16_f32 v{24+k}, v{16+2*k}, v{16+2*k+1}")
    A.e("s_nop 1")
    A.e("v_permlane32_swap_b32 v24, v26")
    A.e("v_permlane32_swap_b32 v25, v27")
    A.e(f"s_cmp_eq_u32 s{sW}, 7")
    A.e("s_cbranch_scc1 k_nostore")
    A.e(f"buffer_store_dwordx4 v[24:27], v{vOut}, s[{SOUT}:{SOUT+3}], s{sT} offen")
    A.label("k_nostore")
    if prof:
        A.e("s_waitcnt vmcnt(0)")
        stamp("end")
        A.e(f"s_cmp_eq_u32 s{sW}, 0")
        A.e("s_cbranch_scc0 k_end")
        A.e("s_lshl_b32 s3, s2, 7")
        A.e(f"s_add_u32 s3, s3, {PROF_OFF}")
        A.e(f"s_mov_b32 s{SWS+2}, 0x800000")
        A.e("s_mov_b64 exec, 1")
        A.e("v_mov_b32 v1, 0")
        for k in range(18):
            A.e(f"v_mov_b32 v2, s{sProf+k}")
            A.e(f"buffer_store_dword v2, v1, s[{SWS}:{SWS+3}], s3 offen{boff(4*k)}")
            A.e("s_waitcnt vmcnt(0)")
    A.e("s_branch k_end")

    A.label("k_fallback")
    A.e(f"s_mov_b32 s{sPass}, 1")
    vM = TMP + 8
    A.e(f"v_mov_b32 v{vM}, 0xff800000")
    A.e(f"s_mov_b32 s{sT}, 0")
    A.label("k_maxloop")
    A.e(f"buffer_load_dwordx4 {v(vK,4)}, v{vL16}, s[{SKV}:{SKV+3}], s{sT} offen sc1")
    A.e(f"buffer_load_dwordx4 {v(vK+4,4)}, v{vL16}, s[{SKV}:{SKV+3}], s{sT} offen offset:1024 sc1")
    A.e("s_waitcnt vmcnt(0)")
    A.e(mfma32(vS0, vK, vQ, None))
    A.e(mfma32(vS0, vK + 4, vQ + 4, vS0))
    A.e(f"s_add_u32 s{sT}, s{sT}, 4096")
    A.e("s_nop 7")
    A.e("s_nop 3")
    for k in range(8):
        A.e(f"v_max3_f32 v{vM}, v{vS0+2*k}, v{vS0+2*k+1}, v{vM}")
    A.e(f"s_cmp_lt_u32 s{sT}, 0x40000")
    A.e("s_cbranch_scc1 k_maxloop")
    A.e(f"v_mov_b32 v{vM+1}, v{vM}")
    A.e("s_nop 1")
    A.e(f"v_permlane32_swap_b32 v{vM}, v{vM+1}")
    A.e("s_nop 1")
    A.e(f"v_max_f32 v{vM}, v{vM}, v{vM+1}")
    for r in range(16):
        A.e(f"v_sub_f32 v{vC+r}, 0, v{vM}")
    A.e("s_barrier")
    for ch in range(2):
        kv_m0(ch)
        A.e("s_nop 0")
        for k in range(4):
            kv_dma(ch, k)
    A.e("s_branch k_attn")
    A.label("k_end")
    A.e("s_endpgm")
    return A.text(), names


HEADER = """; Gated mix of two multi-query attention branches, S=2048, D=448, H=16, Dh=28, one launch.
; @launch grid=(256,1,1) block=(512,1,1) lds={l}
.amdgcn_target "amdgcn-amd-amdhsa--gfx950"
.text
"""

KD = """.amdhsa_kernel {name}
  .amdhsa_next_free_vgpr {nv}
  .amdhsa_next_free_sgpr 102
  .amdhsa_accum_offset {nv}
  .amdhsa_group_segment_fixed_size 0
  .amdhsa_kernarg_size 112
  .amdhsa_user_sgpr_count 2
  .amdhsa_user_sgpr_kernarg_segment_ptr 1
  .amdhsa_system_sgpr_workgroup_id_x 1
.end_amdhsa_kernel
"""


def build(prof=False, opts=None):
    body, names = gen(prof, opts)
    t = HEADER.format(l=LDS)
    if prof:
        t += "; stamps: " + ",".join(names) + "\n"
    t += f".globl {KN}\n.p2align 8\n.type {KN},@function\n{KN}:\n" + body
    t += '.section .rodata,"a"\n.p2align 6\n' + KD.format(name=KN, nv=256)
    return t


if __name__ == "__main__":
    out = sys.argv[1] if len(sys.argv) > 1 else f"cdna_kernels/{NAME}.s"
    prof = "prof" in sys.argv[2:]
    opts = {}
    for a_ in sys.argv[2:]:
        if "=" in a_:
            k_, v_ = a_.split("=")
            opts[k_] = int(v_)
    open(out, "w").write(build(prof, opts))
    print("wrote", out)
```

```python
import sys
sys.path.insert(0, "gen")
from asmlib import *

NAME = "gated_mix__grouped_kv_mqa__grouped_kv_mqa__prompt"
KN = NAME + "_kernel"

KV_OFF, G_OFF, SEED_OFF, FLAG_OFF, KVF_OFF, O_OFF, WS_USED = 0x0, 0x80000, 0x83000, 0x84000, 0x88000, 0x100000, 0x500000
TAG_HI, TAG_LO = 0x9E3779B9, 0x7F4A7C15
PROF_OFF = 0x600000
X_BYTES, W_BYTES, WK_BYTES = 2048 * 896, 448 * 896, 448 * 56
LOG2E = 1.4426950408889634


def fbits(x):
    import struct
    return "0x%08x" % struct.unpack("<I", struct.pack("<f", x))[0]


class Cnt:
    def __init__(self, cap):
        self.q, self.cap = [], cap

    def issue(self, tag):
        self.q.append(tag)

    def need(self, *tags):
        idx = -1
        for t in tags:
            for i, x in enumerate(self.q):
                if x == t:
                    idx = max(idx, i)
        if idx < 0:
            return None
        n = min(len(self.q) - idx - 1, self.cap)
        self.q = self.q[len(self.q) - n:] if n else []
        return n

    def drain(self):
        self.q = []


class K(Asm):
    def __init__(self):
        super().__init__()
        self.vm, self.lg = Cnt(63), Cnt(15)

    def wait(self, vm=(), lg=()):
        a = self.vm.need(*vm) if vm else None
        b = self.lg.need(*lg) if lg else None
        if a is not None or b is not None:
            self.e(waitcnt(a, b))

    def wait0(self, vm=True, lg=True):
        self.e(waitcnt(0 if vm else None, 0 if lg else None))
        if vm: self.vm.drain()
        if lg: self.lg.drain()

    def ds(self, text, tag):
        self.e(text); self.lg.issue(tag)

    def vmem(self, text, tag):
        self.e(text); self.vm.issue(tag)

    def srd(self, d, lo, hi, n):
        self.e(f"s_mov_b32 s{d}, s{lo}")
        self.e(f"s_mov_b32 s{d+1}, s{hi}")
        self.e(f"s_mov_b32 s{d+2}, {n}")
        self.e(f"s_mov_b32 s{d+3}, 0x20000")


def boff(n):
    assert 0 <= n < 4096, n
    return f" offset:{n}" if n else ""


def doff(n):
    assert 0 <= n < 65536, n
    return f" offset:{n}" if n else ""


LDS = 163840
WA = 0
XL = 71936
KVR = 129280
WO_L = 98304
FAILW = 159744
XCH = 65536


def gen(prof=False, opts=None):
    o = dict(prio=True, R=16, pollc=5)
    o.update(opts or {})
    R = o["R"]
    A = K()
    SX, SWQ, SKV, SWO, SWS, SOUT, SWK, SG = 16, 20, 24, 28, 32, 36, 88, 92
    sW, sB, sMT, sHG, sQT, sHL, sCT, sBB = 40, 41, 42, 43, 44, 45, 46, 47
    sKVL, sWoL, sWoG, sT, sT2, sPass, sCnt, sOst, sFlg, sOld = 48, 49, 50, 51, 52, 53, 54, 55, 56, 57
    sWl0, sXl, sXg, sT3 = 58, 59, 60, 61
    sProf, sCyc, sN = 64, 80, 100
    vL16, vL16b, vT, vT2, vG, vWoA, vWoA0 = 1, 2, 3, 4, 5, 6, 7
    vQ, vS0, vS1, vP, vO, vK, vV, vC = 8, 16, 32, 48, 56, 72, 80, 88
    TMP, WO = 104, 128
    names = []

    def stamp(name, cyc=None):
        if prof:
            A.e("s_memrealtime s[96:97]")
            if cyc is not None:
                A.e("s_memtime s[98:99]")
            A.e("s_waitcnt lgkmcnt(0)")
            A.lg.drain()
            A.e(f"s_mov_b32 s{sProf+len(names)}, s96")
            if cyc is not None:
                A.e(f"s_mov_b32 s{sCyc+cyc}, s98")
            names.append(name)

    A.e("s_cmp_ge_u32 s2, 256")
    A.e("s_cbranch_scc1 k_end")
    A.e(f"s_and_b32 s{sB}, s2, 1")
    A.e(f"s_mul_i32 s3, s{sB}, 40")
    A.e(f"s_load_dwordx2 s[{SX}:{SX+1}], s[0:1], 0")
    A.e(f"s_bfe_u32 s{sHG}, s2, 0x20003")
    A.e(f"s_lshr_b32 s{sT}, s{sHG}, 1")
    A.e(f"s_lshl_b32 s{sT}, s{sT}, 3")
    A.e(f"s_add_u32 s{sT}, s{sT}, s3")
    A.e(f"s_add_u32 s{sT}, s{sT}, 16")
    A.e(f"s_load_dwordx2 s[{SWK}:{SWK+1}], s[0:1], s{sT}")
    A.e(f"s_load_dwordx2 s[{SG}:{SG+1}], s[0:1], 80")
    A.e("s_add_u32 s3, s3, 8")
    A.e(f"s_load_dwordx2 s[6:7], s[0:1], s3")
    A.e("s_load_dwordx2 s[14:15], s[0:1], 104")
    A.e("s_load_dwordx2 s[8:9], s[0:1], 32")
    A.e("s_load_dwordx2 s[10:11], s[0:1], 72")
    A.e("s_load_dwordx2 s[12:13], s[0:1], 88")
    if prof:
        A.e("s_memrealtime s[96:97]")
        names.append("start")
    A.e("v_lshrrev_b32 v1, 6, v0")
    A.e("v_and_b32 v0, 63, v0")
    A.e(f"v_readfirstlane_b32 s{sW}, v1")
    A.c("mt = 8*((id&7)>>1) + (id>>5), hg = (id>>3)&3")
    A.e("s_bfe_u32 s3, s2, 0x20001")
    A.e("s_lshl_b32 s3, s3, 3")
    A.e(f"s_lshr_b32 s{sMT}, s2, 5")
    A.e(f"s_add_u32 s{sMT}, s{sMT}, s3")
    A.e(f"v_lshlrev_b32 v{vL16}, 4, v0")
    vXe, vXo, vW0, vW1, vWa, vWa4, vWa5, vXa = 104, 105, 106, 107, 108, 109, 110, 112
    vU, vU2, vTr, vXk, vGo, vPart, vRed = 116, 117, 120, 121, 125, 126, 127
    WF, XF, GF, KACC, RD = 192, 208, 224, 240, 128
    A.c("x source of DMA r (8 rows): (i>>3)*896 + (((i&7) ^ (4(r&1) + (i>>4)))*16)")
    A.e(f"v_lshrrev_b32 v{vT}, 4, v0")
    A.e(f"v_and_b32 v{vT2}, 7, v0")
    A.e(f"v_xor_b32 v{vT}, v{vT}, v{vT2}")
    A.e(f"v_lshlrev_b32 v{vT}, 4, v{vT}")
    A.e(f"v_lshrrev_b32 v{vT2}, 3, v0")
    A.e(f"v_mul_u32_u24 v{vT2}, 896, v{vT2}")
    A.e(f"v_add_u32 v{vXe}, v{vT}, v{vT2}")
    A.e(f"v_xor_b32 v{vXo}, 64, v{vXe}")
    A.e(f"v_lshrrev_b32 v{vGo}, 5, v0")
    A.e(f"v_lshlrev_b32 v{vGo}, 4, v{vGo}")
    A.c("x chunk w: global 64mt*896 + 128w, LDS XL + 8192w; the 32 rows of this block's K/V tile (half = hg&1) go first")
    A.e(f"s_mul_i32 s{sXg}, s{sMT}, {64*896}")
    A.e(f"s_lshl_b32 s3, s{sW}, 7")
    A.e(f"s_add_u32 s{sXg}, s{sXg}, s3")
    A.e(f"s_lshl_b32 s{sXl}, s{sW}, 13")
    A.e(f"s_add_u32 s{sXl}, s{sXl}, {XL}")
    A.e(f"s_and_b32 s{sT3}, s{sHG}, 1")
    A.e(f"s_mul_i32 s{sT}, s{sT3}, {32*896}")
    A.e(f"s_lshl_b32 s{sT2}, s{sT3}, 12")
    sXg1, sXl1, sXg2, sXl2 = 4, 5, 62, 63
    A.e(f"s_add_u32 s{sXg1}, s{sXg}, s{sT}")
    A.e(f"s_add_u32 s{sXl1}, s{sXl}, s{sT2}")
    A.e(f"s_sub_u32 s{sT}, {32*896}, s{sT}")
    A.e(f"s_sub_u32 s{sT2}, 4096, s{sT2}")
    A.e(f"s_add_u32 s{sXg2}, s{sXg}, s{sT}")
    A.e(f"s_add_u32 s{sXl2}, s{sXl}, s{sT2}")
    sKl, sKg, sGg = sCnt, sOst, sFlg
    A.e(f"s_lshl_b32 s{sKl}, s{sW}, 12")
    A.e(f"s_add_u32 s{sKl}, s{sKl}, {KVR}")
    A.e(f"s_mul_i32 s{sKg}, s{sW}, 3584")
    A.e(f"s_lshl_b32 s{sGg}, s{sW}, 7")
    A.e(f"s_mul_i32 s{sWl0}, s{sW}, 1792")
    A.e(f"s_mul_i32 s{sOld}, s{sHG}, 224")
    A.e(f"s_cmp_eq_u32 s{sW}, 7")
    A.e("s_waitcnt lgkmcnt(0)")
    A.e(f"s_mov_b32 s{SX+2}, {X_BYTES}")
    A.e(f"s_mov_b32 s{SX+3}, 0x20000")
    A.e("s_cbranch_scc1 k_nokv0")
    A.e(f"s_mov_b32 s{SWK+2}, {WK_BYTES}")
    A.e(f"s_mov_b32 s{SWK+3}, 0x20000")

    def x_dma(sg, sl, k):
        A.e(f"s_add_u32 m0, s{sl}, {1024*k}")
        A.e(f"s_add_u32 s{sT}, s{sg}, {7168*k}")
        A.vmem(f"buffer_load_dwordx4 v{vXo if k & 1 else vXe}, s[{SX}:{SX+3}], s{sT} offen lds", sg)

    for k in range(4):
        x_dma(sXg1, sXl1, k)
    A.e(f"s_mov_b32 m0, s{sKl}")
    A.e(f"s_mov_b32 s{SG+2}, 896")
    A.e(f"s_mov_b32 s{SG+3}, 0x20000")
    for u in range(4):
        A.vmem(f"buffer_load_dwordx4 v{vL16}, s[{SWK}:{SWK+3}], s{sKg} offen{boff(1024*u)} lds", "WK")
    for st in range(4):
        A.vmem(f"buffer_load_dwordx4 {v(GF+4*st,4)}, v{vGo}, s[{SG}:{SG+3}], s{sGg} offen{boff(32*st)}", "G")
    for k in range(4):
        x_dma(sXg2, sXl2, k)
    A.label("k_nokv0")
    if prof:
        A.e(f"s_mov_b32 s{sProf}, s96")
    A.srd(SWS, 14, 15, WS_USED)
    A.e(f"s_add_u32 s{SWQ}, s6, s{sOld}")
    A.e(f"s_addc_u32 s{SWQ+1}, s7, 0")
    A.e(f"s_sub_u32 s{SWQ+2}, {W_BYTES}, s{sOld}")
    A.e(f"s_mov_b32 s{SWQ+3}, 0x20000")
    A.c("seed word of the hand-off tag")
    A.e(f"v_mov_b32 v{vT}, 0")
    A.e(f"s_mov_b32 s3, {SEED_OFF}")
    A.vmem(f"buffer_load_dwordx2 v[{vP}:{vP+1}], v{vT}, s[{SWS}:{SWS+3}], s3 offen sc1", "SEED")
    A.c("W source: p = 64u+i, pos = p/14, k = (pos&~7) + 4(pos&1) + ((pos&7)>>1), (8w+k)*896 + (p%14)*16")
    for u, dst in ((0, vW0), (1, vW1)):
        A.e(f"v_add_u32 v{vT}, {64*u}, v0")
        A.e(f"v_mul_u32_u24 v{vT2}, 4682, v{vT}")
        A.e(f"v_lshrrev_b32 v{vT2}, 16, v{vT2}")
        A.e(f"v_mul_u32_u24 v{vU}, 14, v{vT2}")
        A.e(f"v_sub_u32 v{vT}, v{vT}, v{vU}")
        A.e(f"v_lshlrev_b32 v{vT}, 4, v{vT}")
        A.e(f"v_and_b32 v{vU}, 8, v{vT2}")
        A.e(f"v_and_b32 v{vU2}, 1, v{vT2}")
        A.e(f"v_lshl_add_u32 v{vU}, v{vU2}, 2, v{vU}")
        A.e(f"v_bfe_u32 v{vU2}, v{vT2}, 1, 2")
        A.e(f"v_add_u32 v{vU}, v{vU}, v{vU2}")
        A.e(f"v_lshl_add_u32 v{vU}, s{sW}, 3, v{vU}")
        A.e(f"v_mul_u32_u24 v{vU}, 896, v{vU}")
        A.e(f"v_add_u32 v{dst}, v{vU}, v{vT}")

    def wq_dma(c):
        base = WA + 14336 * c if c < 5 else KVR + 14336 * (c - 5)
        for u, src in ((0, vW0), (1, vW1)):
            A.e(f"s_add_u32 m0, s{sWl0}, {base + 1024*u}")
            if u == 0:
                A.e(f"s_mov_b32 s{sT}, {57344*c}")
            else:
                A.e("s_nop 0")
            A.vmem(f"buffer_load_dwordx4 v{src}, s[{SWQ}:{SWQ+3}], s{sT} offen lds", ("Q", c))

    for c in range(5):
        wq_dma(c)
    stamp("issued")
    A.c("W_k / W_v transposed read: KVR + 4096w + (8h + (i>>2))*56 + 32(g&1) + 8(i&3)")
    A.e(f"v_lshrrev_b32 v{vT}, 5, v0")
    A.e(f"v_bfe_u32 v{vTr}, v0, 2, 2")
    A.e(f"v_lshl_add_u32 v{vTr}, v{vT}, 3, v{vTr}")
    A.e(f"v_mul_u32_u24 v{vTr}, 56, v{vTr}")
    A.e(f"v_bfe_u32 v{vT2}, v0, 4, 1")
    A.e(f"v_lshlrev_b32 v{vT2}, 5, v{vT2}")
    A.e(f"v_and_b32 v{vU}, 3, v0")
    A.e(f"v_lshl_add_u32 v{vT2}, v{vU}, 3, v{vT2}")
    A.e(f"v_add_u32 v{vTr}, v{vTr}, v{vT2}")
    A.e(f"v_add_u32 v{vTr}, s{sKl}, v{vTr}")
    A.e(f"v_add_u32 v{vPart}, s{sKl}, v{vL16}")
    A.c("x fragment read: q*128 + (((2st+h) ^ ((q>>1)&7))*16), q = 32*half + (l&31)")
    A.e(f"v_and_b32 v{vU}, 31, v0")
    A.e(f"v_bfe_u32 v{vU2}, v0, 1, 3")
    A.e(f"v_xor_b32 v{vU2}, v{vU2}, v{vT}")
    A.e(f"v_lshlrev_b32 v{vU2}, 4, v{vU2}")
    A.e(f"v_lshl_add_u32 v{vU2}, v{vU}, 7, v{vU2}")
    A.e(f"v_add_u32 v{vXk}, s{sXl1}, v{vU2}")
    for st in range(1, 4):
        A.e(f"v_xor_b32 v{vXk+st}, {st << 5}, v{vXk}")
    A.e(f"s_and_b32 s{sQT}, s{sW}, 1")
    A.e(f"s_lshr_b32 s{sHL}, s{sW}, 1")
    A.e(f"s_and_b32 s{sCT}, s{sW}, 3")
    A.e(f"s_lshr_b32 s{sBB}, s{sW}, 2")
    A.e(f"s_lshl_b32 s3, s{sQT}, 12")
    A.e(f"s_add_u32 s3, s3, {XL}")
    A.e(f"v_add_u32 v{vXa}, s3, v{vU2}")
    for st in range(1, 4):
        A.e(f"v_xor_b32 v{vXa+st}, {st << 5}, v{vXa}")
    A.c("W_q transposed read: (8h + 2(i>>2))*224 + 56hl + 32(g&1) + 8(i&3)")
    A.e(f"v_bfe_u32 v{vU}, v0, 2, 2")
    A.e(f"v_lshlrev_b32 v{vU2}, 1, v{vU}")
    A.e(f"v_lshl_add_u32 v{vU2}, v{vT}, 3, v{vU2}")
    A.e(f"v_mul_u32_u24 v{vWa}, 224, v{vU2}")
    A.e(f"v_add_u32 v{vWa}, v{vWa}, v{vT2}")
    A.e(f"s_mul_i32 s3, s{sHL}, 56")
    A.e(f"v_add_u32 v{vWa}, s3, v{vWa}")
    A.e(f"v_add_u32 v{vWa4}, {WA + 4*14336}, v{vWa}")
    A.e(f"v_add_u32 v{vWa5}, {KVR}, v{vWa}")
    A.c("Wo transposed read: WoL + (4h + (i>>2))*64 + 32(g&1) + 8(i&3); variant with h = 0 for the padded rows")
    A.e(f"s_mul_i32 s{sWoL}, s{sW}, 7168")
    A.e(f"s_add_u32 s{sWoL}, s{sWoL}, {WO_L}")
    A.e(f"v_lshl_add_u32 v{vWoA0}, v{vU}, 6, v{vT2}")
    A.e(f"v_add_u32 v{vWoA0}, s{sWoL}, v{vWoA0}")
    A.e(f"v_lshl_add_u32 v{vWoA}, v{vT}, 8, v{vWoA0}")
    A.c("reducer q = w reads registers 4q..4q+3 of every partial")
    A.e(f"s_lshl_b32 s3, s{sW}, 10")
    A.e(f"s_add_u32 s3, s3, {KVR}")
    A.e(f"v_add_u32 v{vRed}, s3, v{vL16}")
    A.e(f"v_and_b32 v{vT}, 31, v0")
    A.e(f"v_cmp_eq_u32 vcc, 28, v{vT}")
    A.e(f"s_cmp_eq_u32 s{sW}, 7")
    A.e("s_cbranch_scc1 k_nokv1")
    A.wait(vm=["G"])
    stamp("crit landed")
    for st in range(4):
        for u in range(2):
            A.e(f"ds_read_b64_tr_b16 {v(WF+4*st+2*u,2)}, v{vTr}{doff(896*st+224*u)}")
        A.e(f"ds_read_b128 {v(XF+4*st,4)}, v{vXk+st}")
    A.e(f"s_cmp_lt_u32 s{sHG}, 2")
    A.e("s_waitcnt lgkmcnt(0)")
    A.e("s_cbranch_scc0 k_vjob")
    A.c("column 28 of the weight fragment carries gate_w, so row 28 of the K product is the gate logit")
    for r in range(16):
        A.e(f"v_cndmask_b32 v{WF+r}, v{WF+r}, v{GF+r}, vcc")
    A.e("s_nop 0")
    for st in range(4):
        A.e(mfma32(KACC, WF + 4 * st, XF + 4 * st, None if st == 0 else KACC))
    A.e("s_branch k_part")
    A.label("k_vjob")
    for st in range(4):
        A.e(mfma32(KACC, XF + 4 * st, WF + 4 * st, None if st == 0 else KACC))
    A.label("k_part")
    A.e("s_nop 7")
    A.e("s_nop 3")
    for q in range(4):
        A.e(f"ds_write_b128 v{vPart}, {v(KACC+4*q,4)}{doff(1024*q)}")
    A.e("s_waitcnt lgkmcnt(0)")
    A.label("k_nokv1")
    A.e("s_barrier")
    stamp("partials")
    A.e(f"s_cmp_lt_u32 s{sW}, 4")
    A.e("s_cbranch_scc0 k_nored0")
    for p in range(7):
        A.e(f"ds_read_b128 {v(RD+4*p,4)}, v{vRed}{doff(4096*p)}")
    A.label("k_nored0")
    A.c("K/V image offset: b*262144 + (2mt+half)*4096 + (2kv + (w>>1))*1024 + 8(w&1) + lane*16")
    A.e(f"s_lshl_b32 s3, s{sB}, 18")
    A.e(f"s_lshl_b32 s{sT}, s{sMT}, 1")
    A.e(f"s_add_u32 s{sT}, s{sT}, s{sT3}")
    A.e(f"s_lshl_b32 s{sT2}, s{sT}, 12")
    A.e(f"s_add_u32 s3, s3, s{sT2}")
    A.e(f"s_lshl_b32 s{sT}, s{sT}, 7")
    A.e(f"s_add_u32 s{sKg}, s{sT}, {G_OFF}")
    A.e(f"s_lshr_b32 s{sT2}, s{sHG}, 1")
    A.e(f"s_lshl_b32 s{sT2}, s{sT2}, 11")
    A.e(f"s_add_u32 s3, s3, s{sT2}")
    A.e(f"s_bfe_u32 s{sT2}, s{sW}, 0x10001")
    A.e(f"s_lshl_b32 s{sT2}, s{sT2}, 10")
    A.e(f"s_add_u32 s3, s3, s{sT2}")
    A.e(f"s_and_b32 s{sT2}, s{sW}, 1")
    A.e(f"s_lshl_b32 s{sT2}, s{sT2}, 3")
    A.e(f"s_add_u32 s{sGg}, s3, s{sT2}")
    A.e(f"v_and_b32 v{vT}, 31, v0")
    A.e(f"s_cmp_lt_u32 s{sW}, 4")
    A.e("s_waitcnt lgkmcnt(0)")
    A.e("s_barrier")
    A.e("s_cbranch_scc0 k_nored1")
    for r in range(4):
        A.e(f"v_add_f32 v{RD+r}, v{RD+r}, v{RD+4+r}")
        A.e(f"v_add_f32 v{RD+8+r}, v{RD+8+r}, v{RD+12+r}")
        A.e(f"v_add_f32 v{RD+16+r}, v{RD+16+r}, v{RD+20+r}")
    for r in range(4):
        A.e(f"v_add_f32 v{RD+r}, v{RD+r}, v{RD+8+r}")
        A.e(f"v_add_f32 v{RD+16+r}, v{RD+16+r}, v{RD+24+r}")
    for r in range(4):
        A.e(f"v_add_f32 v{RD+r}, v{RD+r}, v{RD+16+r}")
    vKo = RD + 4
    A.e(f"v_cvt_pk_bf16_f32 v{vKo}, v{RD}, v{RD+1}")
    A.e(f"v_cvt_pk_bf16_f32 v{vKo+1}, v{RD+2}, v{RD+3}")
    A.e(f"s_cmp_lt_u32 s{sHG}, 2")
    A.e("s_cbranch_scc0 k_vpad")
    A.e(f"s_cmp_eq_u32 s{sW}, 3")
    A.e("s_cbranch_scc0 k_kvst")
    A.c("K, registers 12..15: rows 28..31 live in the upper half-wave")
    A.e("s_mov_b32 exec_lo, 0")
    A.e(f"v_mov_b32 v{vKo}, 0")
    A.e(f"v_mov_b32 v{vKo+1}, 0")
    A.e("s_mov_b32 exec_lo, -1")
    A.e("s_branch k_kvst")
    A.label("k_vpad")
    A.e(f"v_mov_b32 v{RD+8}, 0")
    A.e(f"v_mov_b32 v{RD+9}, 0x3f803f80")
    A.e(f"v_cmp_eq_u32 vcc, 28, v{vT}")
    A.e("s_nop 1")
    A.e(f"v_cndmask_b32 v{RD+8}, v{RD+8}, v{RD+9}, vcc")
    A.e(f"v_cmp_gt_u32 vcc, 28, v{vT}")
    A.e("s_nop 1")
    A.e(f"v_cndmask_b32 v{vKo}, v{RD+8}, v{vKo}, vcc")
    A.e(f"v_cndmask_b32 v{vKo+1}, v{RD+8}, v{vKo+1}, vcc")
    A.label("k_kvst")
    A.e(f"buffer_store_dwordx2 v[{vKo}:{vKo+1}], v{vL16}, s[{SWS}:{SWS+3}], s{sGg} offen sc1")
    A.c("gate values: branch A, K tiles, wave 3, upper half-wave")
    A.e(f"s_cmp_eq_u32 s{sW}, 3")
    A.e("s_cbranch_scc0 k_nored1")
    A.e(f"s_lshl_b32 s3, s{sB}, 2")
    A.e(f"s_add_u32 s3, s3, s{sHG}")
    A.e("s_cmp_lt_u32 s3, 2")
    A.e("s_cbranch_scc0 k_nored1")
    A.e(f"v_mul_f32 v{RD+8}, {fbits(-LOG2E)}, v{RD}")
    A.e(f"v_exp_f32 v{RD+8}, v{RD+8}")
    A.e(f"v_lshlrev_b32 v{RD+9}, 2, v{vT}")
    A.e(f"v_add_f32 v{RD+8}, 1.0, v{RD+8}")
    A.e(f"v_rcp_f32 v{RD+8}, v{RD+8}")
    A.e("s_mov_b32 exec_lo, 0")
    A.e(f"buffer_store_dword v{RD+8}, v{RD+9}, s[{SWS}:{SWS+3}], s{sKg} offen sc1")
    A.e("s_mov_b32 exec_lo, -1")
    A.label("k_nored1")
    stamp("kv stored")
    for c in (5, 6):
        wq_dma(c)
    A.e("s_waitcnt vmcnt(4)")
    A.vm.q = A.vm.q[-4:]
    A.e("s_barrier")
    stamp("drained")
    A.c("publish the K/V tile: tag = seed + step, one 8-byte flag per replica")
    A.e(f"v_readfirstlane_b32 s{sN}, v{vP}")
    A.e(f"v_readfirstlane_b32 s{sN+1}, v{vP+1}")
    A.e(f"s_add_u32 s{sN}, s{sN}, {hex(TAG_LO)}")
    A.e(f"s_addc_u32 s{sN+1}, s{sN+1}, {hex(TAG_HI)}")
    sKF = sCnt
    A.e(f"s_mul_i32 s{sKF}, s{sB}, {R*1024}")
    A.e(f"s_add_u32 s{sKF}, s{sKF}, {KVF_OFF}")
    A.e(f"s_cmp_eq_u32 s{sW}, 0")
    A.e("s_cbranch_scc0 k_nopub")
    A.e(f"s_lshl_b32 s3, s{sMT}, 2")
    A.e(f"s_add_u32 s3, s3, s{sHG}")
    A.e("s_lshl_b32 s3, s3, 3")
    A.e(f"s_add_u32 s3, s3, s{sKF}")
    A.e(f"v_lshlrev_b32 v{vT}, 10, v0")
    A.e(f"v_mov_b32 v{vP}, s{sN}")
    A.e(f"v_mov_b32 v{vP+1}, s{sN+1}")
    A.e(f"s_mov_b32 exec_lo, {hex((1 << R) - 1 if R < 32 else 0xFFFFFFFF)}")
    A.e(f"s_mov_b32 exec_hi, {hex((1 << (R - 32)) - 1 if R > 32 else 0)}")
    A.e(f"buffer_store_dwordx2 v[{vP}:{vP+1}], v{vT}, s[{SWS}:{SWS+3}], s3 offen sc1")
    A.e("s_mov_b64 exec, -1")
    A.label("k_nopub")
    A.c("replica polled by this block")
    A.e(f"s_lshr_b32 s3, s2, 1")
    A.e(f"s_and_b32 s3, s3, {R-1}")
    A.e("s_lshl_b32 s3, s3, 10")
    A.e(f"s_add_u32 s{sKF}, s{sKF}, s3")
    A.e(f"s_lshl_b32 s3, s{sB}, 18")
    A.e(f"s_add_u32 s{SKV}, s14, s3")
    A.e(f"s_addc_u32 s{SKV+1}, s15, 0")
    A.e(f"s_mov_b32 s{SKV+2}, 0x40000")
    A.e(f"s_mov_b32 s{SKV+3}, 0x20000")
    A.e(f"s_cmp_eq_u32 s{sBB}, 0")
    A.e(f"s_cselect_b32 s{SWO}, s8, s10")
    A.e(f"s_cselect_b32 s{SWO+1}, s9, s11")
    A.e(f"s_mov_b32 s{SWO+2}, {W_BYTES}")
    A.e(f"s_mov_b32 s{SWO+3}, 0x20000")
    A.srd(SOUT, 12, 13, X_BYTES)
    A.e(f"s_lshl_b32 s{sKVL}, s{sW}, 12")
    A.e(f"s_mul_i32 s{sWoG}, s{sHG}, 224")
    A.e(f"s_lshl_b32 s3, s{sCT}, 6")
    A.e(f"s_add_u32 s{sWoG}, s{sWoG}, s3")
    A.e(f"s_mov_b32 s{sPass}, 0")
    A.c("o image of this wave: O_OFF + ((mt*2+qt)*2+b)*32768 + head*2048")
    A.e(f"s_lshl_b32 s3, s{sMT}, 1")
    A.e(f"s_add_u32 s3, s3, s{sQT}")
    A.e("s_lshl_b32 s3, s3, 1")
    A.e(f"s_add_u32 s3, s3, s{sB}")
    A.e("s_lshl_b32 s3, s3, 15")
    A.e(f"s_lshl_b32 s{sT}, s{sHG}, 2")
    A.e(f"s_add_u32 s{sT}, s{sT}, s{sHL}")
    A.e(f"s_lshl_b32 s{sT}, s{sT}, 11")
    A.e(f"s_add_u32 s3, s3, s{sT}")
    A.e(f"s_add_u32 s{sOst}, s3, {O_OFF}")
    A.c("flag line of this row block; o images consumed: q-tile b of block mt")
    A.e(f"s_lshl_b32 s{sFlg}, s{sMT}, 7")
    A.e(f"s_add_u32 s{sFlg}, s{sFlg}, {FLAG_OFF}")
    A.e(f"s_lshl_b32 s3, s{sMT}, 1")
    A.e(f"s_add_u32 s3, s3, s{sB}")
    A.e("s_lshl_b32 s3, s3, 16")
    A.e(f"s_add_u32 s{sOld}, s3, {O_OFF}")
    A.e(f"v_add_u32 v{vL16b}, 0x10000, v{vL16}")
    for r in range(16):
        A.e(f"v_mov_b32 v{vC+r}, 0")

    def kv_dma(chunk, k):
        A.vmem(f"buffer_load_dwordx4 v{vL16}, s[{SKV}:{SKV+3}], s{sT} offen{boff(1024*k)} sc1 lds", ("KV", chunk))

    def kv_m0(chunk):
        A.e(f"s_add_u32 m0, s{sKVL}, {(chunk % 3) * 32768}")
        A.e(f"s_add_u32 s{sT}, s{sKVL}, {chunk * 32768}")

    QB = [128, 160]
    vPoll = vK

    def q_mfma(c):
        b0 = QB[c & 1]
        for st in range(4):
            A.e(mfma32(vS0, b0 + 4 * st, b0 + 16 + 4 * st, None if (c == 0 and st == 0) else vS0))

    def q_reads(c):
        b0 = QB[c & 1]
        wb, wo_ = (vWa, 14336 * c) if c < 4 else (vWa4, 0) if c == 4 else (vWa5, 14336 * (c - 5))
        for st in range(4):
            for u in range(2):
                A.ds(f"ds_read_b64_tr_b16 {v(b0+4*st+2*u,2)}, v{wb}{doff(wo_+(16*st+u)*224)}", ("q", c))
            A.ds(f"ds_read_b128 {v(b0+16+4*st,4)}, v{vXa+st}{doff(8192*c)}", ("q", c))

    def poll_load():
        A.vmem(f"buffer_load_dwordx4 {v(vPoll,4)}, v{vL16}, s[{SWS}:{SWS+3}], s{sKF} offen sc1", "POLL")

    for c in range(7):
        if c == 5:
            A.wait0(lg=False)
            A.e("s_barrier")
        if c == o["pollc"]:
            A.e(f"s_cmp_eq_u32 s{sW}, 0")
            A.e("s_cbranch_scc0 k_nopoll0")
            poll_load()
            A.label("k_nopoll0")
        q_reads(c)
        if c > 0:
            A.wait(lg=[("q", c - 1)])
            q_mfma(c - 1)
    A.wait0(vm=False)
    q_mfma(6)
    stamp("qproj")
    A.c("all 128 K/V tiles of this branch must be published before the first tile is fetched")
    A.e(f"s_cmp_eq_u32 s{sW}, 0")
    A.e("s_cbranch_scc0 k_kvseen")
    A.e(f"s_mov_b32 s{sT2}, 0")
    A.label("k_kvpoll")
    A.e("s_waitcnt vmcnt(0)")
    A.e(f"v_cmp_ne_u64 vcc, s[{sN}:{sN+1}], v[{vPoll}:{vPoll+1}]")
    A.e(f"v_cmp_ne_u64 s[62:63], s[{sN}:{sN+1}], v[{vPoll+2}:{vPoll+3}]")
    A.e("s_or_b64 vcc, vcc, s[62:63]")
    A.e("s_cbranch_vccz k_kvseen")
    A.e(f"buffer_load_dwordx4 {v(vPoll,4)}, v{vL16}, s[{SWS}:{SWS+3}], s{sKF} offen sc1")
    A.e(f"s_add_u32 s{sT2}, s{sT2}, 1")
    A.e(f"s_cmp_lt_u32 s{sT2}, 0x40000")
    A.e("s_cbranch_scc1 k_kvpoll")
    A.label("k_kvseen")
    A.wait0()
    A.e("s_barrier")
    stamp("kv seen")
    for ch in range(2):
        kv_m0(ch)
        A.e("s_nop 0")
        for k in range(4):
            kv_dma(ch, k)
    sc = (28 ** -0.5) * LOG2E
    A.e(f"s_mov_b32 s{sT2}, {fbits(sc)}")
    for r in range(16):
        A.e(f"v_mul_f32 v{vS0+r}, s{sT2}, v{vS0+r}")
    for k in range(8):
        A.e(f"v_cvt_pk_bf16_f32 v{vQ+k}, v{vS0+2*k}, v{vS0+2*k+1}")
    A.e("s_mov_b32 exec_lo, 0")
    A.e(f"v_mov_b32 v{vQ+6}, 0")
    A.e(f"v_mov_b32 v{vQ+7}, 0")
    A.e("s_mov_b32 exec_lo, -1")

    def ring(t, part):
        slot = (t >> 3) % 3
        off = slot * 32768 + (t & 7) * 4096 + part * 1024
        return (vL16, off) if off < 65536 else (vL16b, off - 65536)

    def rd(dst, t, part):
        base, off = ring(t, part)
        A.ds(f"ds_read_b128 {v(dst,4)}, v{base}{doff(off)}", (t, part))

    def wo_dma(r, u):
        A.e(f"s_add_u32 m0, s{sWoL}, {1024*u}")
        A.e(f"s_add_u32 s{sT2}, s{sWoG}, {(112*r+16*u)*896}")
        return (f"buffer_load_dwordx4 v{vWoS}, s[{SWO}:{SWO+3}], s{sT2} offen lds", ("WO", r))

    def wo_rd(r, n):
        hd, s_, u = n >> 2, (n >> 1) & 1, n & 1
        base = vWoA0 if (s_ == 1 and u == 1) else vWoA
        dst = WO + 8 * (4 * r + hd) + 4 * s_ + 2 * u
        A.ds(f"ds_read_b64_tr_b16 {v(dst,2)}, v{base}{doff((28*hd+16*s_+8*u)*64)}", ("wo", r))

    vWoS = 104
    A.c("Wo staging source: (i>>2)*896 + (i&3)*16")
    A.e(f"v_lshrrev_b32 v{vT}, 2, v0")
    A.e(f"v_mul_u32_u24 v{vT}, 896, v{vT}")
    A.e(f"v_and_b32 v{vT2}, 3, v0")
    A.e(f"v_lshl_add_u32 v{vWoS}, v{vT2}, 4, v{vT}")

    A.label("k_attn")
    A.wait0()
    A.e("s_barrier")
    stamp("attn start", cyc=0)
    rd(vK, 0, 0); rd(vK + 4, 0, 1)
    A.wait(lg=[(0, 1)])
    A.e(mfma32(vS0, vK, vQ, vC))
    A.e(mfma32(vS0, vK + 4, vQ + 4, vS0))
    rd(vK, 1, 0); rd(vK + 4, 1, 1); rd(vV, 0, 2)
    A.e("s_nop 7")
    A.e("s_nop 3")
    for t in range(64):
        n, i = t >> 3, t & 7
        Sc = vS0 if t % 2 == 0 else vS1
        Sn = vS1 if t % 2 == 0 else vS0
        E = lambda r: A.e(f"v_exp_f32 v{Sc+r}, v{Sc+r}")
        C = lambda k: A.e(f"v_cvt_pk_bf16_f32 v{vP+k}, v{Sc+2*k}, v{Sc+2*k+1}")
        kvp = (n < 6 and i < 4)
        wod = []
        if n % 2 == 0 and i >= 4:
            wod = [2 * (i - 4), 2 * (i - 4) + 1] if i < 7 else [6]
        wor = []
        if n % 2 == 0 and n >= 2 and i < 4:
            wor = list(range(4 * i, 4 * i + 4))
        if o["prio"] and i % 2 == 0:
            A.e(f"s_setprio {3 - i // 2}")
        if kvp and i == 0:
            kv_m0(n + 2)
        tags = []
        if t < 63: tags.append((t + 1, 0))
        if t > 0: tags.append((t - 1, 3))
        A.wait(lg=tags)
        if t < 63:
            A.e(mfma32(Sn, vK, vQ, vC))
        if t + 2 < 64:
            rd(vK, t + 2, 0)
        E(0); E(1); E(2); C(0); E(3)
        if t > 0:
            A.e(mfma32(vO, vV + 4, vP + 4, vO))
        rd(vV + 4, t, 3)
        if kvp:
            kv_dma(n + 2, i)
        pend = None
        if wod:
            A.wait(lg=[("wo", n // 2 - 1)])
            pend = wo_dma(n // 2, wod[0])
        E(4)
        if pend:
            A.vmem(*pend)
        C(1); E(5); E(6); C(2); E(7)
        tags = [(t, 2)]
        if t < 63: tags.append((t + 1, 1))
        A.wait(lg=tags)
        if t < 63:
            A.e(mfma32(Sn, vK + 4, vQ + 4, Sn))
        if t + 2 < 64:
            rd(vK + 4, t + 2, 1)
        pend = None
        if len(wod) > 1:
            pend = wo_dma(n // 2, wod[1])
        E(8)
        if pend:
            A.vmem(*pend)
        C(3); E(9); E(10); C(4); E(11)
        A.e(mfma32(vO, vV, vP, None if t == 0 else vO))
        if t + 1 < 64:
            rd(vV, t + 1, 2)
        for x in wor:
            wo_rd(n // 2 - 1, x)
        E(12); C(5); E(13); E(14); E(15); C(6); C(7)
        if i == 7 and n < 6:
            a = A.vm.need(("KV", n + 2))
            b = A.lg.need((t, 3))
            A.e(waitcnt(a, b))
            A.e("s_barrier")
    A.wait(lg=[(63, 3)])
    A.e("s_nop 1")
    A.e(mfma32(vO, vV + 4, vP + 4, vO))
    if o["prio"]:
        A.e("s_setprio 0")
    stamp("attn end", cyc=1)

    A.e("s_nop 7")
    A.e("s_nop 3")
    vLs, vLt, vSum = TMP + 8, TMP + 9, TMP + 10
    A.e(f"v_mov_b32 v{vLs}, v{vO+12}")
    A.e(f"v_mov_b32 v{vLt}, v{vO+12}")
    A.e(f"v_add_f32 v{vSum}, v{vO}, v{vO+1}")
    A.e(f"v_add_f32 v{vSum}, v{vSum}, v{vO+2}")
    A.e(f"v_permlane32_swap_b32 v{vLs}, v{vLt}")
    for r in range(3, 16):
        A.e(f"v_add_f32 v{vSum}, v{vSum}, v{vO+r}")
    A.e(f"v_rcp_f32 v{vLs}, v{vLt}")
    A.c("row sum must lie in [2^-24, 2^100] and every accumulator must be finite, else redo with the true row maximum")
    A.e(f"s_mov_b32 s{sT}, 0x207")
    A.e(f"v_cmp_class_f32 vcc, v{vSum}, s{sT}")
    A.e(f"s_mov_b32 s{sT}, {fbits(2.0**-24)}")
    A.e(f"v_cmp_nle_f32 s[62:63], s{sT}, v{vLt}")
    A.e("s_or_b64 vcc, vcc, s[62:63]")
    A.e(f"s_mov_b32 s{sT}, {fbits(2.0**100)}")
    A.e(f"v_cmp_nge_f32 s[62:63], s{sT}, v{vLt}")
    A.e("s_or_b64 vcc, vcc, s[62:63]")
    A.e("s_cmp_lg_u64 vcc, 0")
    A.e(f"s_cselect_b32 s{sT}, 1, 0")
    A.e(f"s_cmp_eq_u32 s{sPass}, 0")
    A.e(f"s_cselect_b32 s{sT}, s{sT}, 0")
    A.e(f"v_mov_b32 v{vT}, s{sT}")
    A.e(f"s_lshl_b32 s3, s{sW}, 2")
    A.e(f"s_add_u32 s3, s3, {FAILW}")
    A.e(f"v_mov_b32 v{vT2}, s3")
    A.e("s_mov_b64 exec, 1")
    A.e(f"ds_write_b32 v{vT2}, v{vT}")
    A.e("s_mov_b64 exec, -1")
    for r in range(16):
        A.e(f"v_mul_f32 v{vO+r}, v{vO+r}, v{vLs}")
    for k in range(8):
        A.e(f"v_cvt_pk_bf16_f32 v{vP+k}, v{vO+2*k}, v{vO+2*k+1}")
    A.e("s_mov_b32 exec_lo, 0")
    A.e(f"v_mov_b32 v{vP+6}, 0")
    A.e(f"v_mov_b32 v{vP+7}, 0")
    A.e("s_mov_b32 exec_lo, -1")
    A.e(f"buffer_store_dwordx4 {v(vP,4)}, v{vL16}, s[{SWS}:{SWS+3}], s{sOst} offen sc1")
    A.e(f"buffer_store_dwordx4 {v(vP+4,4)}, v{vL16}, s[{SWS}:{SWS+3}], s{sOst} offen offset:1024 sc1")
    A.e(f"v_and_b32 v{vT}, 7, v0")
    A.e(f"v_lshlrev_b32 v{vT}, 2, v{vT}")
    A.e(f"v_add_u32 v{vT2}, {FAILW}, v{vT}")
    A.e(f"v_lshlrev_b32 v{vT}, 1, v{vT}")
    A.e("s_waitcnt lgkmcnt(0)")
    A.e("s_barrier")
    A.e(f"ds_read_b32 v{vT2}, v{vT2}")
    A.e("s_waitcnt vmcnt(0) lgkmcnt(0)")
    A.vm.drain(); A.lg.drain()
    A.e(f"v_cmp_ne_u32 vcc, 0, v{vT2}")
    A.e("s_cbranch_vccnz k_fallback")
    A.e("s_barrier")
    stamp("norm+drain")
    A.c("publish: one 8-byte tag per member b*4 + hg")
    A.e(f"s_cmp_eq_u32 s{sW}, 0")
    A.e("s_cbranch_scc0 k_noflag")
    A.e(f"s_lshl_b32 s3, s{sB}, 2")
    A.e(f"s_add_u32 s3, s3, s{sHG}")
    A.e("s_lshl_b32 s3, s3, 3")
    A.e(f"s_add_u32 s3, s3, s{sFlg}")
    A.e(f"v_mov_b32 v{vK}, s{sN}")
    A.e(f"v_mov_b32 v{vK+1}, s{sN+1}")
    A.e(f"v_mov_b32 v{TMP}, 0")
    A.e("s_mov_b64 exec, 1")
    A.e(f"buffer_store_dwordx2 v[{vK}:{vK+1}], v{TMP}, s[{SWS}:{SWS+3}], s3 offen sc1")
    A.e("s_mov_b64 exec, -1")
    A.label("k_noflag")
    for x in range(16):
        wo_rd(3, x)
    A.e(f"s_cmp_eq_u32 s{sW}, 0")
    A.e("s_cbranch_scc0 k_nopoll")
    A.e(f"s_mov_b32 s{sCnt}, 0")
    A.label("k_poll")
    A.e(f"buffer_load_dwordx2 v[{vK+2}:{vK+3}], v{vT}, s[{SWS}:{SWS+3}], s{sFlg} offen sc1")
    A.e(f"s_add_u32 s{sCnt}, s{sCnt}, 1")
    A.e("s_waitcnt vmcnt(0)")
    A.e(f"v_cmp_ne_u64 vcc, s[{sN}:{sN+1}], v[{vK+2}:{vK+3}]")
    A.e("s_cbranch_vccz k_pollok")
    A.e(f"s_cmp_lt_u32 s{sCnt}, 0x40000")
    A.e("s_cbranch_scc1 k_poll")
    A.label("k_pollok")
    A.c("every block has read the seed by now (each member passed its K/V wait): block 0 advances it to this launch's tag")
    A.e("s_cmp_eq_u32 s2, 0")
    A.e("s_cbranch_scc0 k_nopoll")
    A.e(f"s_mov_b32 s3, {SEED_OFF}")
    A.e("s_mov_b64 exec, 1")
    A.e(f"buffer_store_dwordx2 v[{vK}:{vK+1}], v{TMP}, s[{SWS}:{SWS+3}], s3 offen sc1")
    A.e("s_mov_b64 exec, -1")
    A.label("k_nopoll")
    A.e("s_barrier")
    stamp("poll")
    A.c("o fragments: wave loads branch bb, head 4*stage + ct; LDS image [bb][head][s][lane]")
    A.e(f"s_lshl_b32 s3, s{sBB}, 15")
    A.e(f"s_lshl_b32 s{sT}, s{sCT}, 11")
    A.e(f"s_add_u32 s3, s3, s{sT}")
    A.e(f"s_add_u32 s{sT}, s3, s{sOld}")
    for st in range(4):
        A.e(f"s_add_u32 m0, s3, {8192*st}")
        A.e(f"s_add_u32 s{sT2}, s{sT}, {8192*st}")
        for k in range(2):
            A.vmem(f"buffer_load_dwordx4 v{vL16}, s[{SWS}:{SWS+3}], s{sT2} offen{boff(1024*k)} sc1 lds", ("O", st))
    A.c("gate value of the output rows: g[64mt + 32b + (l&31)]")
    A.e(f"v_and_b32 v{vT}, 31, v0")
    A.e(f"v_lshlrev_b32 v{vT}, 2, v{vT}")
    A.e(f"s_lshl_b32 s3, s{sMT}, 8")
    A.e(f"s_lshl_b32 s{sT}, s{sB}, 7")
    A.e(f"s_add_u32 s3, s3, s{sT}")
    A.e(f"s_add_u32 s3, s3, {G_OFF}")
    A.vmem(f"buffer_load_dword v{vG}, v{vT}, s[{SWS}:{SWS+3}], s3 offen sc1", "g")
    vOb = TMP + 11
    A.e(f"s_lshl_b32 s3, s{sBB}, 15")
    A.e(f"v_add_u32 v{vOb}, s3, v{vL16}")
    ACC = vC
    OB = [16, 48]

    def o_mfma(st):
        b0 = OB[st & 1]
        for hd in range(4):
            for s_ in range(2):
                H = 4 * st + hd
                A.e(mfma32(ACC, WO + 8 * H + 4 * s_, b0 + 8 * hd + 4 * s_, None if (st == 0 and hd == 0 and s_ == 0) else ACC))
    for st in range(4):
        A.wait(vm=[("O", st)])
        A.e("s_barrier")
        b0 = OB[st & 1]
        for hd in range(4):
            for s_ in range(2):
                A.ds(f"ds_read_b128 {v(b0+8*hd+4*s_,4)}, v{vOb}{doff((4*st+hd)*2048+s_*1024)}", ("ob", st))
        if st > 0:
            o_mfma(st - 1)
        A.wait(lg=[("ob", st)])
    o_mfma(3)
    A.c("exchange halves with the wave of the other branch")
    A.e(f"s_lshl_b32 s3, s{sW}, 11")
    A.e(f"s_add_u32 s3, s3, {XCH}")
    A.e(f"v_add_u32 v{vT}, s3, v{vL16}")
    A.e(f"s_xor_b32 s3, s{sW}, 4")
    A.e("s_lshl_b32 s3, s3, 11")
    A.e(f"s_add_u32 s3, s3, {XCH}")
    A.e(f"v_add_u32 v{vT2}, s3, v{vL16}")
    A.c("output offset: (64mt + 32b + (l&31))*896 + (112hg + 32ct + 16bb + 8h)*2")
    vOut = TMP + 12
    A.e(f"v_and_b32 v{vOut}, 31, v0")
    A.e(f"v_mul_u32_u24 v{vOut}, 896, v{vOut}")
    A.e(f"v_lshrrev_b32 v{TMP}, 5, v0")
    A.e(f"v_lshl_add_u32 v{vOut}, v{TMP}, 4, v{vOut}")
    A.e(f"s_lshl_b32 s3, s{sMT}, 1")
    A.e(f"s_add_u32 s3, s3, s{sB}")
    A.e(f"s_mul_i32 s3, s3, {32*896}")
    A.e(f"s_lshl_b32 s{sT}, s{sBB}, 5")
    A.e(f"s_add_u32 s3, s3, s{sT}")
    A.e(f"s_add_u32 s{sT}, s3, s{sWoG}")
    A.c("scale: g for branch A, 1 - g for branch B")
    A.wait(vm=["g"])
    A.e(f"v_sub_f32 v{TMP+1}, 1.0, v{vG}")
    A.e(f"s_cmp_eq_u32 s{sBB}, 0")
    A.e("s_cselect_b64 vcc, -1, 0")
    A.e(f"v_cndmask_b32 v{vG}, v{TMP+1}, v{vG}, vcc")
    for r in range(16):
        A.e(f"v_mul_f32 v{ACC+r}, v{ACC+r}, v{vG}")
    A.e(f"s_cmp_eq_u32 s{sBB}, 0")
    A.e("s_cbranch_scc0 k_xb")
    A.e(f"ds_write_b128 v{vT}, {v(ACC+8,4)}")
    A.e(f"ds_write_b128 v{vT}, {v(ACC+12,4)} offset:1024")
    for r in range(8):
        A.e(f"v_mov_b32 v{16+r}, v{ACC+r}")
    A.e("s_branch k_xj")
    A.label("k_xb")
    A.e(f"ds_write_b128 v{vT}, {v(ACC,4)}")
    A.e(f"ds_write_b128 v{vT}, {v(ACC+4,4)} offset:1024")
    for r in range(8):
        A.e(f"v_mov_b32 v{16+r}, v{ACC+8+r}")
    A.label("k_xj")
    A.e("s_waitcnt lgkmcnt(0)")
    A.e("s_barrier")
    A.e(f"ds_read_b128 v[24:27], v{vT2}")
    A.e(f"ds_read_b128 v[28:31], v{vT2} offset:1024")
    A.e("s_waitcnt lgkmcnt(0)")
    for r in range(8):
        A.e(f"v_add_f32 v{16+r}, v{16+r}, v{24+r}")
    for k in range(4):
        A.e(f"v_cvt_pk_bf16_f32 v{24+k}, v{16+2*k}, v{16+2*k+1}")
    A.e("s_nop 1")
    A.e("v_permlane32_swap_b32 v24, v26")
    A.e("v_permlane32_swap_b32 v25, v27")
    A.e(f"s_cmp_eq_u32 s{sW}, 7")
    A.e("s_cbranch_scc1 k_nostore")
    A.e(f"buffer_store_dwordx4 v[24:27], v{vOut}, s[{SOUT}:{SOUT+3}], s{sT} offen")
    A.label("k_nostore")
    if prof:
        A.e("s_waitcnt vmcnt(0)")
        stamp("end")
        if o.get("dbgst"):
            A.e(f"s_cmp_eq_u32 s{sW}, {o.get('dbgw', 0)}")
            A.e("s_cbranch_scc0 k_end")
            A.e("s_load_dwordx2 s[28:29], s[0:1], 96")
            A.e("s_mov_b32 s30, 256")
            A.e("s_mov_b32 s31, 0x20000")
            A.e("s_waitcnt lgkmcnt(0)")
            A.e("s_mov_b64 exec, 1")
            A.e("v_mov_b32 v1, 0")
            for k in range(min(16, len(names))):
                if o["dbgst"] == 1:
                    A.e(f"s_not_b32 s3, s{sProf}" if k == 0 else f"s_mov_b32 s3, s{sProf+k}")
                    A.e("v_mov_b32 v2, s3")
                    A.e(f"buffer_atomic_umax v2, v1, s[28:31], 0 offen{boff(4*k)}")
                else:
                    A.e("s_mov_b32 s3, 1" if k == 0 else f"s_sub_u32 s3, s{sProf+k}, s{sProf}")
                    A.e("v_mov_b32 v2, s3")
                    A.e(f"buffer_atomic_add v2, v1, s[28:31], 0 offen{boff(4*k)}")
                A.e("s_waitcnt vmcnt(0)")
            A.e("s_branch k_end")
        A.e(f"s_cmp_eq_u32 s{sW}, 0")
        A.e("s_cbranch_scc0 k_end")
        A.e("s_lshl_b32 s3, s2, 7")
        A.e(f"s_add_u32 s3, s3, {PROF_OFF}")
        A.e(f"s_mov_b32 s{SWS+2}, 0x800000")
        A.e("s_mov_b64 exec, 1")
        A.e("v_mov_b32 v1, 0")
        for k in range(18):
            A.e(f"v_mov_b32 v2, s{sProf+k}")
            A.e(f"buffer_store_dword v2, v1, s[{SWS}:{SWS+3}], s3 offen{boff(4*k)}")
            A.e("s_waitcnt vmcnt(0)")
    A.e("s_branch k_end")

    A.label("k_fallback")
    A.e(f"s_mov_b32 s{sPass}, 1")
    vM = TMP + 8
    A.e(f"v_mov_b32 v{vM}, 0xff800000")
    A.e(f"s_mov_b32 s{sT}, 0")
    A.label("k_maxloop")
    A.e(f"buffer_load_dwordx4 {v(vK,4)}, v{vL16}, s[{SKV}:{SKV+3}], s{sT} offen sc1")
    A.e(f"buffer_load_dwordx4 {v(vK+4,4)}, v{vL16}, s[{SKV}:{SKV+3}], s{sT} offen offset:1024 sc1")
    A.e("s_waitcnt vmcnt(0)")
    A.e(mfma32(vS0, vK, vQ, None))
    A.e(mfma32(vS0, vK + 4, vQ + 4, vS0))
    A.e(f"s_add_u32 s{sT}, s{sT}, 4096")
    A.e("s_nop 7")
    A.e("s_nop 3")
    for k in range(8):
        A.e(f"v_max3_f32 v{vM}, v{vS0+2*k}, v{vS0+2*k+1}, v{vM}")
    A.e(f"s_cmp_lt_u32 s{sT}, 0x40000")
    A.e("s_cbranch_scc1 k_maxloop")
    A.e(f"v_mov_b32 v{vM+1}, v{vM}")
    A.e("s_nop 1")
    A.e(f"v_permlane32_swap_b32 v{vM}, v{vM+1}")
    A.e("s_nop 1")
    A.e(f"v_max_f32 v{vM}, v{vM}, v{vM+1}")
    for r in range(16):
        A.e(f"v_sub_f32 v{vC+r}, 0, v{vM}")
    A.e("s_barrier")
    for ch in range(2):
        kv_m0(ch)
        A.e("s_nop 0")
        for k in range(4):
            kv_dma(ch, k)
    A.e("s_branch k_attn")
    A.label("k_end")
    A.e("s_endpgm")
    return A.text(), names


HEADER = """; Gated mix of two multi-query attention branches, S=2048, D=448, H=16, Dh=28, one launch.
; @launch grid=(256,1,1) block=(512,1,1) lds={l}
.amdgcn_target "amdgcn-amd-amdhsa--gfx950"
.text
"""

KD = """.amdhsa_kernel {name}
  .amdhsa_next_free_vgpr {nv}
  .amdhsa_next_free_sgpr 102
  .amdhsa_accum_offset {nv}
  .amdhsa_group_segment_fixed_size 0
  .amdhsa_kernarg_size 112
  .amdhsa_user_sgpr_count 2
  .amdhsa_user_sgpr_kernarg_segment_ptr 1
  .amdhsa_system_sgpr_workgroup_id_x 1
.end_amdhsa_kernel
"""


def build(prof=False, opts=None):
    body, names = gen(prof, opts)
    t = HEADER.format(l=LDS)
    if prof:
        t += "; stamps: " + ",".join(names) + "\n"
    t += f".globl {KN}\n.p2align 8\n.type {KN},@function\n{KN}:\n" + body
    t += '.section .rodata,"a"\n.p2align 6\n' + KD.format(name=KN, nv=256)
    return t


if __name__ == "__main__":
    out = sys.argv[1] if len(sys.argv) > 1 else f"cdna_kernels/{NAME}.s"
    prof = "prof" in sys.argv[2:]
    opts = {}
    for a_ in sys.argv[2:]:
        if "=" in a_:
            k_, v_ = a_.split("=")
            opts[k_] = int(v_)
    open(out, "w").write(build(prof, opts))
    print("wrote", out)
```

```python
import sys
sys.path.insert(0, "gen")
from asmlib import *

NAME = "gated_mix__grouped_kv_mqa__grouped_kv_mqa__prompt"
KN = NAME + "_kernel"

KV_OFF, G_OFF, SEED_OFF, FLAG_OFF, KVF_OFF, O_OFF, WS_USED = 0x0, 0x80000, 0x83000, 0x84000, 0x88000, 0x100000, 0x500000
TAG_HI, TAG_LO = 0x9E3779B9, 0x7F4A7C15
PROF_OFF = 0x600000
X_BYTES, W_BYTES, WK_BYTES = 2048 * 896, 448 * 896, 448 * 56
LOG2E = 1.4426950408889634


def fbits(x):
    import struct
    return "0x%08x" % struct.unpack("<I", struct.pack("<f", x))[0]


class Cnt:
    def __init__(self, cap):
        self.q, self.cap = [], cap

    def issue(self, tag):
        self.q.append(tag)

    def need(self, *tags):
        idx = -1
        for t in tags:
            for i, x in enumerate(self.q):
                if x == t:
                    idx = max(idx, i)
        if idx < 0:
            return None
        n = min(len(self.q) - idx - 1, self.cap)
        self.q = self.q[len(self.q) - n:] if n else []
        return n

    def drain(self):
        self.q = []


class K(Asm):
    def __init__(self):
        super().__init__()
        self.vm, self.lg = Cnt(63), Cnt(15)

    def wait(self, vm=(), lg=()):
        a = self.vm.need(*vm) if vm else None
        b = self.lg.need(*lg) if lg else None
        if a is not None or b is not None:
            self.e(waitcnt(a, b))

    def wait0(self, vm=True, lg=True):
        self.e(waitcnt(0 if vm else None, 0 if lg else None))
        if vm: self.vm.drain()
        if lg: self.lg.drain()

    def ds(self, text, tag):
        self.e(text); self.lg.issue(tag)

    def vmem(self, text, tag):
        self.e(text); self.vm.issue(tag)

    def srd(self, d, lo, hi, n):
        self.e(f"s_mov_b32 s{d}, s{lo}")
        self.e(f"s_mov_b32 s{d+1}, s{hi}")
        self.e(f"s_mov_b32 s{d+2}, {n}")
        self.e(f"s_mov_b32 s{d+3}, 0x20000")


def boff(n):
    assert 0 <= n < 4096, n
    return f" offset:{n}" if n else ""


def doff(n):
    assert 0 <= n < 65536, n
    return f" offset:{n}" if n else ""


LDS = 163840
WA = 0
XL = 71936
KVR = 129280
WO_L = 98304
FAILW = 159744
XCH = 65536


def gen(prof=False, opts=None):
    o = dict(prio=True, R=16, pollc=5, pf=1)
    o.update(opts or {})
    R = o["R"]
    A = K()
    SX, SWQ, SKV, SWO, SWS, SOUT, SWK, SG = 16, 20, 24, 28, 32, 36, 88, 92
    sW, sB, sMT, sHG, sQT, sHL, sCT, sBB = 40, 41, 42, 43, 44, 45, 46, 47
    sKVL, sWoL, sWoG, sT, sT2, sPass, sCnt, sOst, sFlg, sOld = 48, 49, 50, 51, 52, 53, 54, 55, 56, 57
    sWl0, sXl, sXg, sT3 = 58, 59, 60, 61
    sProf, sCyc, sN = 64, 80, 100
    vL16, vL16b, vT, vT2, vG, vWoA, vWoA0 = 1, 2, 3, 4, 5, 6, 7
    vQ, vS0, vS1, vP, vO, vK, vV, vC = 8, 16, 32, 48, 56, 72, 80, 88
    TMP, WO = 104, 128
    names = []

    def stamp(name, cyc=None):
        if prof:
            A.e("s_memrealtime s[96:97]")
            if cyc is not None:
                A.e("s_memtime s[98:99]")
            A.e("s_waitcnt lgkmcnt(0)")
            A.lg.drain()
            A.e(f"s_mov_b32 s{sProf+len(names)}, s96")
            if cyc is not None:
                A.e(f"s_mov_b32 s{sCyc+cyc}, s98")
            names.append(name)

    A.e("s_cmp_ge_u32 s2, 256")
    A.e("s_cbranch_scc1 k_end")
    A.e(f"s_and_b32 s{sB}, s2, 1")
    A.e(f"s_mul_i32 s3, s{sB}, 40")
    A.e(f"s_load_dwordx2 s[{SX}:{SX+1}], s[0:1], 0")
    A.e(f"s_bfe_u32 s{sHG}, s2, 0x20003")
    A.e(f"s_lshr_b32 s{sT}, s{sHG}, 1")
    A.e(f"s_lshl_b32 s{sT}, s{sT}, 3")
    A.e(f"s_add_u32 s{sT}, s{sT}, s3")
    A.e(f"s_add_u32 s{sT}, s{sT}, 16")
    A.e(f"s_load_dwordx2 s[{SWK}:{SWK+1}], s[0:1], s{sT}")
    A.e(f"s_load_dwordx2 s[{SG}:{SG+1}], s[0:1], 80")
    A.e("s_add_u32 s3, s3, 8")
    A.e(f"s_load_dwordx2 s[6:7], s[0:1], s3")
    A.e("s_load_dwordx2 s[14:15], s[0:1], 104")
    A.e("s_load_dwordx2 s[8:9], s[0:1], 32")
    A.e("s_load_dwordx2 s[10:11], s[0:1], 72")
    A.e("s_load_dwordx2 s[12:13], s[0:1], 88")
    if prof:
        A.e("s_memrealtime s[96:97]")
        names.append("start")
    A.e("v_lshrrev_b32 v1, 6, v0")
    A.e("v_and_b32 v0, 63, v0")
    A.e(f"v_readfirstlane_b32 s{sW}, v1")
    A.c("mt = 8*((id&7)>>1) + (id>>5), hg = (id>>3)&3")
    A.e("s_bfe_u32 s3, s2, 0x20001")
    A.e("s_lshl_b32 s3, s3, 3")
    A.e(f"s_lshr_b32 s{sMT}, s2, 5")
    A.e(f"s_add_u32 s{sMT}, s{sMT}, s3")
    A.e(f"v_lshlrev_b32 v{vL16}, 4, v0")
    vXe, vXo, vW0, vW1, vWa, vWa4, vWa5, vXa = 104, 105, 106, 107, 108, 109, 110, 112
    vU, vU2, vTr, vXk, vGo, vPart, vRed = 116, 117, 120, 121, 125, 126, 127
    WF, XF, GF, KACC, RD = 192, 208, 224, 240, 128
    A.c("x source of DMA r (8 rows): (i>>3)*896 + (((i&7) ^ (4(r&1) + (i>>4)))*16)")
    A.e(f"v_lshrrev_b32 v{vT}, 4, v0")
    A.e(f"v_and_b32 v{vT2}, 7, v0")
    A.e(f"v_xor_b32 v{vT}, v{vT}, v{vT2}")
    A.e(f"v_lshlrev_b32 v{vT}, 4, v{vT}")
    A.e(f"v_lshrrev_b32 v{vT2}, 3, v0")
    A.e(f"v_mul_u32_u24 v{vT2}, 896, v{vT2}")
    A.e(f"v_add_u32 v{vXe}, v{vT}, v{vT2}")
    A.e(f"v_xor_b32 v{vXo}, 64, v{vXe}")
    A.e(f"v_lshrrev_b32 v{vGo}, 5, v0")
    A.e(f"v_lshlrev_b32 v{vGo}, 4, v{vGo}")
    A.c("x chunk w: global 64mt*896 + 128w, LDS XL + 8192w; the 32 rows of this block's K/V tile (half = hg&1) go first")
    A.e(f"s_mul_i32 s{sXg}, s{sMT}, {64*896}")
    A.e(f"s_lshl_b32 s3, s{sW}, 7")
    A.e(f"s_add_u32 s{sXg}, s{sXg}, s3")
    A.e(f"s_lshl_b32 s{sXl}, s{sW}, 13")
    A.e(f"s_add_u32 s{sXl}, s{sXl}, {XL}")
    A.e(f"s_and_b32 s{sT3}, s{sHG}, 1")
    A.e(f"s_mul_i32 s{sT}, s{sT3}, {32*896}")
    A.e(f"s_lshl_b32 s{sT2}, s{sT3}, 12")
    sXg1, sXl1, sXg2, sXl2 = 4, 5, 62, 63
    A.e(f"s_add_u32 s{sXg1}, s{sXg}, s{sT}")
    A.e(f"s_add_u32 s{sXl1}, s{sXl}, s{sT2}")
    A.e(f"s_sub_u32 s{sT}, {32*896}, s{sT}")
    A.e(f"s_sub_u32 s{sT2}, 4096, s{sT2}")
    A.e(f"s_add_u32 s{sXg2}, s{sXg}, s{sT}")
    A.e(f"s_add_u32 s{sXl2}, s{sXl}, s{sT2}")
    sKl, sKg, sGg = sCnt, sOst, sFlg
    A.e(f"s_lshl_b32 s{sKl}, s{sW}, 12")
    A.e(f"s_add_u32 s{sKl}, s{sKl}, {KVR}")
    A.e(f"s_mul_i32 s{sKg}, s{sW}, 3584")
    A.e(f"s_lshl_b32 s{sGg}, s{sW}, 7")
    A.e(f"s_mul_i32 s{sWl0}, s{sW}, 1792")
    A.e(f"s_mul_i32 s{sOld}, s{sHG}, 224")
    if o["pf"]:
        A.c("L2 warm-up of W_q: the 32 blocks with equal id&7 touch 98 lines each, 13 per wave")
        A.e("s_lshr_b32 s3, s2, 3")
        A.e("s_mul_i32 s3, s3, 98")
        A.e(f"s_mul_i32 s{sT}, s{sW}, 13")
        A.e(f"s_add_u32 s3, s3, s{sT}")
        A.e(f"v_add_u32 v{vU}, s3, v0")
        A.e(f"v_lshlrev_b32 v{vU}, 7, v{vU}")
        A.e(f"s_mov_b32 s{SWQ+2}, {W_BYTES}")
        A.e(f"s_mov_b32 s{SWQ+3}, 0x20000")
    A.e("s_waitcnt lgkmcnt(0)")
    A.e(f"s_mov_b32 s{SX+2}, {X_BYTES}")
    A.e(f"s_mov_b32 s{SX+3}, 0x20000")
    if o["pf"]:
        A.e(f"s_mov_b32 s{SWQ}, s6")
        A.e(f"s_mov_b32 s{SWQ+1}, s7")
        A.e("s_mov_b64 exec, 0x1fff")
        A.vmem(f"buffer_load_dword v190, v{vU}, s[{SWQ}:{SWQ+3}], 0 offen", "PF")
        A.e("s_mov_b64 exec, -1")
    A.e(f"s_cmp_eq_u32 s{sW}, 7")
    A.e("s_cbranch_scc1 k_nokv0")
    A.e(f"s_mov_b32 s{SWK+2}, {WK_BYTES}")
    A.e(f"s_mov_b32 s{SWK+3}, 0x20000")

    def x_dma(sg, sl, k):
        A.e(f"s_add_u32 m0, s{sl}, {1024*k}")
        A.e(f"s_add_u32 s{sT}, s{sg}, {7168*k}")
        A.vmem(f"buffer_load_dwordx4 v{vXo if k & 1 else vXe}, s[{SX}:{SX+3}], s{sT} offen lds", sg)

    for k in range(4):
        x_dma(sXg1, sXl1, k)
    A.e(f"s_mov_b32 m0, s{sKl}")
    A.e(f"s_mov_b32 s{SG+2}, 896")
    A.e(f"s_mov_b32 s{SG+3}, 0x20000")
    for u in range(4):
        A.vmem(f"buffer_load_dwordx4 v{vL16}, s[{SWK}:{SWK+3}], s{sKg} offen{boff(1024*u)} lds", "WK")
    for st in range(4):
        A.vmem(f"buffer_load_dwordx4 {v(GF+4*st,4)}, v{vGo}, s[{SG}:{SG+3}], s{sGg} offen{boff(32*st)}", "G")
    for k in range(4):
        x_dma(sXg2, sXl2, k)
    A.label("k_nokv0")
    if prof:
        A.e(f"s_mov_b32 s{sProf}, s96")
    A.srd(SWS, 14, 15, WS_USED)
    A.e(f"s_add_u32 s{SWQ}, s6, s{sOld}")
    A.e(f"s_addc_u32 s{SWQ+1}, s7, 0")
    A.e(f"s_sub_u32 s{SWQ+2}, {W_BYTES}, s{sOld}")
    A.e(f"s_mov_b32 s{SWQ+3}, 0x20000")
    A.c("seed word of the hand-off tag")
    A.e(f"v_mov_b32 v{vT}, 0")
    A.e(f"s_mov_b32 s3, {SEED_OFF}")
    A.vmem(f"buffer_load_dwordx2 v[{vP}:{vP+1}], v{vT}, s[{SWS}:{SWS+3}], s3 offen sc1", "SEED")
    A.c("W source: p = 64u+i, pos = p/14, k = (pos&~7) + 4(pos&1) + ((pos&7)>>1), (8w+k)*896 + (p%14)*16")
    for u, dst in ((0, vW0), (1, vW1)):
        A.e(f"v_add_u32 v{vT}, {64*u}, v0")
        A.e(f"v_mul_u32_u24 v{vT2}, 4682, v{vT}")
        A.e(f"v_lshrrev_b32 v{vT2}, 16, v{vT2}")
        A.e(f"v_mul_u32_u24 v{vU}, 14, v{vT2}")
        A.e(f"v_sub_u32 v{vT}, v{vT}, v{vU}")
        A.e(f"v_lshlrev_b32 v{vT}, 4, v{vT}")
        A.e(f"v_and_b32 v{vU}, 8, v{vT2}")
        A.e(f"v_and_b32 v{vU2}, 1, v{vT2}")
        A.e(f"v_lshl_add_u32 v{vU}, v{vU2}, 2, v{vU}")
        A.e(f"v_bfe_u32 v{vU2}, v{vT2}, 1, 2")
        A.e(f"v_add_u32 v{vU}, v{vU}, v{vU2}")
        A.e(f"v_lshl_add_u32 v{vU}, s{sW}, 3, v{vU}")
        A.e(f"v_mul_u32_u24 v{vU}, 896, v{vU}")
        A.e(f"v_add_u32 v{dst}, v{vU}, v{vT}")

    def wq_dma(c):
        base = WA + 14336 * c if c < 5 else KVR + 14336 * (c - 5)
        for u, src in ((0, vW0), (1, vW1)):
            A.e(f"s_add_u32 m0, s{sWl0}, {base + 1024*u}")
            if u == 0:
                A.e(f"s_mov_b32 s{sT}, {57344*c}")
            else:
                A.e("s_nop 0")
            A.vmem(f"buffer_load_dwordx4 v{src}, s[{SWQ}:{SWQ+3}], s{sT} offen lds", ("Q", c))

    for c in range(5):
        wq_dma(c)
    stamp("issued")
    A.c("W_k / W_v transposed read: KVR + 4096w + (8h + (i>>2))*56 + 32(g&1) + 8(i&3)")
    A.e(f"v_lshrrev_b32 v{vT}, 5, v0")
    A.e(f"v_bfe_u32 v{vTr}, v0, 2, 2")
    A.e(f"v_lshl_add_u32 v{vTr}, v{vT}, 3, v{vTr}")
    A.e(f"v_mul_u32_u24 v{vTr}, 56, v{vTr}")
    A.e(f"v_bfe_u32 v{vT2}, v0, 4, 1")
    A.e(f"v_lshlrev_b32 v{vT2}, 5, v{vT2}")
    A.e(f"v_and_b32 v{vU}, 3, v0")
    A.e(f"v_lshl_add_u32 v{vT2}, v{vU}, 3, v{vT2}")
    A.e(f"v_add_u32 v{vTr}, v{vTr}, v{vT2}")
    A.e(f"v_add_u32 v{vTr}, s{sKl}, v{vTr}")
    A.e(f"v_add_u32 v{vPart}, s{sKl}, v{vL16}")
    A.c("x fragment read: q*128 + (((2st+h) ^ ((q>>1)&7))*16), q = 32*half + (l&31)")
    A.e(f"v_and_b32 v{vU}, 31, v0")
    A.e(f"v_bfe_u32 v{vU2}, v0, 1, 3")
    A.e(f"v_xor_b32 v{vU2}, v{vU2}, v{vT}")
    A.e(f"v_lshlrev_b32 v{vU2}, 4, v{vU2}")
    A.e(f"v_lshl_add_u32 v{vU2}, v{vU}, 7, v{vU2}")
    A.e(f"v_add_u32 v{vXk}, s{sXl1}, v{vU2}")
    for st in range(1, 4):
        A.e(f"v_xor_b32 v{vXk+st}, {st << 5}, v{vXk}")
    A.e(f"s_and_b32 s{sQT}, s{sW}, 1")
    A.e(f"s_lshr_b32 s{sHL}, s{sW}, 1")
    A.e(f"s_and_b32 s{sCT}, s{sW}, 3")
    A.e(f"s_lshr_b32 s{sBB}, s{sW}, 2")
    A.e(f"s_lshl_b32 s3, s{sQT}, 12")
    A.e(f"s_add_u32 s3, s3, {XL}")
    A.e(f"v_add_u32 v{vXa}, s3, v{vU2}")
    for st in range(1, 4):
        A.e(f"v_xor_b32 v{vXa+st}, {st << 5}, v{vXa}")
    A.c("W_q transposed read: (8h + 2(i>>2))*224 + 56hl + 32(g&1) + 8(i&3)")
    A.e(f"v_bfe_u32 v{vU}, v0, 2, 2")
    A.e(f"v_lshlrev_b32 v{vU2}, 1, v{vU}")
    A.e(f"v_lshl_add_u32 v{vU2}, v{vT}, 3, v{vU2}")
    A.e(f"v_mul_u32_u24 v{vWa}, 224, v{vU2}")
    A.e(f"v_add_u32 v{vWa}, v{vWa}, v{vT2}")
    A.e(f"s_mul_i32 s3, s{sHL}, 56")
    A.e(f"v_add_u32 v{vWa}, s3, v{vWa}")
    A.e(f"v_add_u32 v{vWa4}, {WA + 4*14336}, v{vWa}")
    A.e(f"v_add_u32 v{vWa5}, {KVR}, v{vWa}")
    A.c("Wo transposed read: WoL + (4h + (i>>2))*64 + 32(g&1) + 8(i&3); variant with h = 0 for the padded rows")
    A.e(f"s_mul_i32 s{sWoL}, s{sW}, 7168")
    A.e(f"s_add_u32 s{sWoL}, s{sWoL}, {WO_L}")
    A.e(f"v_lshl_add_u32 v{vWoA0}, v{vU}, 6, v{vT2}")
    A.e(f"v_add_u32 v{vWoA0}, s{sWoL}, v{vWoA0}")
    A.e(f"v_lshl_add_u32 v{vWoA}, v{vT}, 8, v{vWoA0}")
    A.c("reducer q = w reads registers 4q..4q+3 of every partial")
    A.e(f"s_lshl_b32 s3, s{sW}, 10")
    A.e(f"s_add_u32 s3, s3, {KVR}")
    A.e(f"v_add_u32 v{vRed}, s3, v{vL16}")
    A.e(f"v_and_b32 v{vT}, 31, v0")
    A.e(f"v_cmp_eq_u32 vcc, 28, v{vT}")
    A.e(f"s_cmp_eq_u32 s{sW}, 7")
    A.e("s_cbranch_scc1 k_nokv1")
    A.wait(vm=["G"])
    stamp("crit landed")
    for st in range(4):
        for u in range(2):
            A.e(f"ds_read_b64_tr_b16 {v(WF+4*st+2*u,2)}, v{vTr}{doff(896*st+224*u)}")
        A.e(f"ds_read_b128 {v(XF+4*st,4)}, v{vXk+st}")
    A.e(f"s_cmp_lt_u32 s{sHG}, 2")
    A.e("s_waitcnt lgkmcnt(0)")
    A.e("s_cbranch_scc0 k_vjob")
    A.c("column 28 of the weight fragment carries gate_w, so row 28 of the K product is the gate logit")
    for r in range(16):
        A.e(f"v_cndmask_b32 v{WF+r}, v{WF+r}, v{GF+r}, vcc")
    A.e("s_nop 0")
    for st in range(4):
        A.e(mfma32(KACC, WF + 4 * st, XF + 4 * st, None if st == 0 else KACC))
    A.e("s_branch k_part")
    A.label("k_vjob")
    for st in range(4):
        A.e(mfma32(KACC, XF + 4 * st, WF + 4 * st, None if st == 0 else KACC))
    A.label("k_part")
    A.e("s_nop 7")
    A.e("s_nop 3")
    for q in range(4):
        A.e(f"ds_write_b128 v{vPart}, {v(KACC+4*q,4)}{doff(1024*q)}")
    A.e("s_waitcnt lgkmcnt(0)")
    A.label("k_nokv1")
    A.e("s_barrier")
    stamp("partials")
    A.e(f"s_cmp_lt_u32 s{sW}, 4")
    A.e("s_cbranch_scc0 k_nored0")
    for p in range(7):
        A.e(f"ds_read_b128 {v(RD+4*p,4)}, v{vRed}{doff(4096*p)}")
    A.label("k_nored0")
    A.c("K/V image offset: b*262144 + (2mt+half)*4096 + (2kv + (w>>1))*1024 + 8(w&1) + lane*16")
    A.e(f"s_lshl_b32 s3, s{sB}, 18")
    A.e(f"s_lshl_b32 s{sT}, s{sMT}, 1")
    A.e(f"s_add_u32 s{sT}, s{sT}, s{sT3}")
    A.e(f"s_lshl_b32 s{sT2}, s{sT}, 12")
    A.e(f"s_add_u32 s3, s3, s{sT2}")
    A.e(f"s_lshl_b32 s{sT}, s{sT}, 7")
    A.e(f"s_add_u32 s{sKg}, s{sT}, {G_OFF}")
    A.e(f"s_lshr_b32 s{sT2}, s{sHG}, 1")
    A.e(f"s_lshl_b32 s{sT2}, s{sT2}, 11")
    A.e(f"s_add_u32 s3, s3, s{sT2}")
    A.e(f"s_bfe_u32 s{sT2}, s{sW}, 0x10001")
    A.e(f"s_lshl_b32 s{sT2}, s{sT2}, 10")
    A.e(f"s_add_u32 s3, s3, s{sT2}")
    A.e(f"s_and_b32 s{sT2}, s{sW}, 1")
    A.e(f"s_lshl_b32 s{sT2}, s{sT2}, 3")
    A.e(f"s_add_u32 s{sGg}, s3, s{sT2}")
    A.e(f"v_and_b32 v{vT}, 31, v0")
    A.e(f"s_cmp_lt_u32 s{sW}, 4")
    A.e("s_waitcnt lgkmcnt(0)")
    A.e("s_barrier")
    A.e("s_cbranch_scc0 k_nored1")
    for r in range(4):
        A.e(f"v_add_f32 v{RD+r}, v{RD+r}, v{RD+4+r}")
        A.e(f"v_add_f32 v{RD+8+r}, v{RD+8+r}, v{RD+12+r}")
        A.e(f"v_add_f32 v{RD+16+r}, v{RD+16+r}, v{RD+20+r}")
    for r in range(4):
        A.e(f"v_add_f32 v{RD+r}, v{RD+r}, v{RD+8+r}")
        A.e(f"v_add_f32 v{RD+16+r}, v{RD+16+r}, v{RD+24+r}")
    for r in range(4):
        A.e(f"v_add_f32 v{RD+r}, v{RD+r}, v{RD+16+r}")
    vKo = RD + 4
    A.e(f"v_cvt_pk_bf16_f32 v{vKo}, v{RD}, v{RD+1}")
    A.e(f"v_cvt_pk_bf16_f32 v{vKo+1}, v{RD+2}, v{RD+3}")
    A.e(f"s_cmp_lt_u32 s{sHG}, 2")
    A.e("s_cbranch_scc0 k_vpad")
    A.e(f"s_cmp_eq_u32 s{sW}, 3")
    A.e("s_cbranch_scc0 k_kvst")
    A.c("K, registers 12..15: rows 28..31 live in the upper half-wave")
    A.e("s_mov_b32 exec_lo, 0")
    A.e(f"v_mov_b32 v{vKo}, 0")
    A.e(f"v_mov_b32 v{vKo+1}, 0")
    A.e("s_mov_b32 exec_lo, -1")
    A.e("s_branch k_kvst")
    A.label("k_vpad")
    A.e(f"v_mov_b32 v{RD+8}, 0")
    A.e(f"v_mov_b32 v{RD+9}, 0x3f803f80")
    A.e(f"v_cmp_eq_u32 vcc, 28, v{vT}")
    A.e("s_nop 1")
    A.e(f"v_cndmask_b32 v{RD+8}, v{RD+8}, v{RD+9}, vcc")
    A.e(f"v_cmp_gt_u32 vcc, 28, v{vT}")
    A.e("s_nop 1")
    A.e(f"v_cndmask_b32 v{vKo}, v{RD+8}, v{vKo}, vcc")
    A.e(f"v_cndmask_b32 v{vKo+1}, v{RD+8}, v{vKo+1}, vcc")
    A.label("k_kvst")
    A.e(f"buffer_store_dwordx2 v[{vKo}:{vKo+1}], v{vL16}, s[{SWS}:{SWS+3}], s{sGg} offen sc1")
    A.c("gate values: branch A, K tiles, wave 3, upper half-wave")
    A.e(f"s_cmp_eq_u32 s{sW}, 3")
    A.e("s_cbranch_scc0 k_nored1")
    A.e(f"s_lshl_b32 s3, s{sB}, 2")
    A.e(f"s_add_u32 s3, s3, s{sHG}")
    A.e("s_cmp_lt_u32 s3, 2")
    A.e("s_cbranch_scc0 k_nored1")
    A.e(f"v_mul_f32 v{RD+8}, {fbits(-LOG2E)}, v{RD}")
    A.e(f"v_exp_f32 v{RD+8}, v{RD+8}")
    A.e(f"v_lshlrev_b32 v{RD+9}, 2, v{vT}")
    A.e(f"v_add_f32 v{RD+8}, 1.0, v{RD+8}")
    A.e(f"v_rcp_f32 v{RD+8}, v{RD+8}")
    A.e("s_mov_b32 exec_lo, 0")
    A.e(f"buffer_store_dword v{RD+8}, v{RD+9}, s[{SWS}:{SWS+3}], s{sKg} offen sc1")
    A.e("s_mov_b32 exec_lo, -1")
    A.label("k_nored1")
    stamp("kv stored")
    for c in (5, 6):
        wq_dma(c)
    A.e("s_waitcnt vmcnt(4)")
    A.vm.q = A.vm.q[-4:]
    A.e("s_barrier")
    stamp("drained")
    A.c("publish the K/V tile: tag = seed + step, one 8-byte flag per replica")
    A.e(f"v_readfirstlane_b32 s{sN}, v{vP}")
    A.e(f"v_readfirstlane_b32 s{sN+1}, v{vP+1}")
    A.e(f"s_add_u32 s{sN}, s{sN}, {hex(TAG_LO)}")
    A.e(f"s_addc_u32 s{sN+1}, s{sN+1}, {hex(TAG_HI)}")
    sKF = sCnt
    A.e(f"s_mul_i32 s{sKF}, s{sB}, {R*1024}")
    A.e(f"s_add_u32 s{sKF}, s{sKF}, {KVF_OFF}")
    A.e(f"s_cmp_eq_u32 s{sW}, 0")
    A.e("s_cbranch_scc0 k_nopub")
    A.e(f"s_lshl_b32 s3, s{sMT}, 2")
    A.e(f"s_add_u32 s3, s3, s{sHG}")
    A.e("s_lshl_b32 s3, s3, 3")
    A.e(f"s_add_u32 s3, s3, s{sKF}")
    A.e(f"v_lshlrev_b32 v{vT}, 10, v0")
    A.e(f"v_mov_b32 v{vP}, s{sN}")
    A.e(f"v_mov_b32 v{vP+1}, s{sN+1}")
    A.e(f"s_mov_b32 exec_lo, {hex((1 << R) - 1 if R < 32 else 0xFFFFFFFF)}")
    A.e(f"s_mov_b32 exec_hi, {hex((1 << (R - 32)) - 1 if R > 32 else 0)}")
    A.e(f"buffer_store_dwordx2 v[{vP}:{vP+1}], v{vT}, s[{SWS}:{SWS+3}], s3 offen sc1")
    A.e("s_mov_b64 exec, -1")
    A.label("k_nopub")
    A.c("replica polled by this block")
    A.e(f"s_lshr_b32 s3, s2, 1")
    A.e(f"s_and_b32 s3, s3, {R-1}")
    A.e("s_lshl_b32 s3, s3, 10")
    A.e(f"s_add_u32 s{sKF}, s{sKF}, s3")
    A.e(f"s_lshl_b32 s3, s{sB}, 18")
    A.e(f"s_add_u32 s{SKV}, s14, s3")
    A.e(f"s_addc_u32 s{SKV+1}, s15, 0")
    A.e(f"s_mov_b32 s{SKV+2}, 0x40000")
    A.e(f"s_mov_b32 s{SKV+3}, 0x20000")
    A.e(f"s_cmp_eq_u32 s{sBB}, 0")
    A.e(f"s_cselect_b32 s{SWO}, s8, s10")
    A.e(f"s_cselect_b32 s{SWO+1}, s9, s11")
    A.e(f"s_mov_b32 s{SWO+2}, {W_BYTES}")
    A.e(f"s_mov_b32 s{SWO+3}, 0x20000")
    A.srd(SOUT, 12, 13, X_BYTES)
    A.e(f"s_lshl_b32 s{sKVL}, s{sW}, 12")
    A.e(f"s_mul_i32 s{sWoG}, s{sHG}, 224")
    A.e(f"s_lshl_b32 s3, s{sCT}, 6")
    A.e(f"s_add_u32 s{sWoG}, s{sWoG}, s3")
    A.e(f"s_mov_b32 s{sPass}, 0")
    A.c("o image of this wave: O_OFF + ((mt*2+qt)*2+b)*32768 + head*2048")
    A.e(f"s_lshl_b32 s3, s{sMT}, 1")
    A.e(f"s_add_u32 s3, s3, s{sQT}")
    A.e("s_lshl_b32 s3, s3, 1")
    A.e(f"s_add_u32 s3, s3, s{sB}")
    A.e("s_lshl_b32 s3, s3, 15")
    A.e(f"s_lshl_b32 s{sT}, s{sHG}, 2")
    A.e(f"s_add_u32 s{sT}, s{sT}, s{sHL}")
    A.e(f"s_lshl_b32 s{sT}, s{sT}, 11")
    A.e(f"s_add_u32 s3, s3, s{sT}")
    A.e(f"s_add_u32 s{sOst}, s3, {O_OFF}")
    A.c("flag line of this row block; o images consumed: q-tile b of block mt")
    A.e(f"s_lshl_b32 s{sFlg}, s{sMT}, 7")
    A.e(f"s_add_u32 s{sFlg}, s{sFlg}, {FLAG_OFF}")
    A.e(f"s_lshl_b32 s3, s{sMT}, 1")
    A.e(f"s_add_u32 s3, s3, s{sB}")
    A.e("s_lshl_b32 s3, s3, 16")
    A.e(f"s_add_u32 s{sOld}, s3, {O_OFF}")
    A.e(f"v_add_u32 v{vL16b}, 0x10000, v{vL16}")
    for r in range(16):
        A.e(f"v_mov_b32 v{vC+r}, 0")

    def kv_dma(chunk, k):
        A.vmem(f"buffer_load_dwordx4 v{vL16}, s[{SKV}:{SKV+3}], s{sT} offen{boff(1024*k)} sc1 lds", ("KV", chunk))

    def kv_m0(chunk):
        A.e(f"s_add_u32 m0, s{sKVL}, {(chunk % 3) * 32768}")
        A.e(f"s_add_u32 s{sT}, s{sKVL}, {chunk * 32768}")

    QB = [128, 160]
    vPoll = vK

    def q_mfma(c):
        b0 = QB[c & 1]
        for st in range(4):
            A.e(mfma32(vS0, b0 + 4 * st, b0 + 16 + 4 * st, None if (c == 0 and st == 0) else vS0))

    def q_reads(c):
        b0 = QB[c & 1]
        wb, wo_ = (vWa, 14336 * c) if c < 4 else (vWa4, 0) if c == 4 else (vWa5, 14336 * (c - 5))
        for st in range(4):
            for u in range(2):
                A.ds(f"ds_read_b64_tr_b16 {v(b0+4*st+2*u,2)}, v{wb}{doff(wo_+(16*st+u)*224)}", ("q", c))
            A.ds(f"ds_read_b128 {v(b0+16+4*st,4)}, v{vXa+st}{doff(8192*c)}", ("q", c))

    def poll_load():
        A.vmem(f"buffer_load_dwordx4 {v(vPoll,4)}, v{vL16}, s[{SWS}:{SWS+3}], s{sKF} offen sc1", "POLL")

    for c in range(7):
        if c == 5:
            A.wait0(lg=False)
            A.e("s_barrier")
        if c == o["pollc"]:
            A.e(f"s_cmp_eq_u32 s{sW}, 0")
            A.e("s_cbranch_scc0 k_nopoll0")
            poll_load()
            A.label("k_nopoll0")
        q_reads(c)
        if c > 0:
            A.wait(lg=[("q", c - 1)])
            q_mfma(c - 1)
    A.wait0(vm=False)
    q_mfma(6)
    stamp("qproj")
    A.c("all 128 K/V tiles of this branch must be published before the first tile is fetched")
    A.e(f"s_cmp_eq_u32 s{sW}, 0")
    A.e("s_cbranch_scc0 k_kvseen")
    A.e(f"s_mov_b32 s{sT2}, 0")
    A.label("k_kvpoll")
    A.e("s_waitcnt vmcnt(0)")
    A.e(f"v_cmp_ne_u64 vcc, s[{sN}:{sN+1}], v[{vPoll}:{vPoll+1}]")
    A.e(f"v_cmp_ne_u64 s[62:63], s[{sN}:{sN+1}], v[{vPoll+2}:{vPoll+3}]")
    A.e("s_or_b64 vcc, vcc, s[62:63]")
    A.e("s_cbranch_vccz k_kvseen")
    A.e(f"buffer_load_dwordx4 {v(vPoll,4)}, v{vL16}, s[{SWS}:{SWS+3}], s{sKF} offen sc1")
    A.e(f"s_add_u32 s{sT2}, s{sT2}, 1")
    A.e(f"s_cmp_lt_u32 s{sT2}, 0x40000")
    A.e("s_cbranch_scc1 k_kvpoll")
    A.label("k_kvseen")
    A.wait0()
    A.e("s_barrier")
    stamp("kv seen")
    for ch in range(2):
        kv_m0(ch)
        A.e("s_nop 0")
        for k in range(4):
            kv_dma(ch, k)
    sc = (28 ** -0.5) * LOG2E
    A.e(f"s_mov_b32 s{sT2}, {fbits(sc)}")
    for r in range(16):
        A.e(f"v_mul_f32 v{vS0+r}, s{sT2}, v{vS0+r}")
    for k in range(8):
        A.e(f"v_cvt_pk_bf16_f32 v{vQ+k}, v{vS0+2*k}, v{vS0+2*k+1}")
    A.e("s_mov_b32 exec_lo, 0")
    A.e(f"v_mov_b32 v{vQ+6}, 0")
    A.e(f"v_mov_b32 v{vQ+7}, 0")
    A.e("s_mov_b32 exec_lo, -1")

    def ring(t, part):
        slot = (t >> 3) % 3
        off = slot * 32768 + (t & 7) * 4096 + part * 1024
        return (vL16, off) if off < 65536 else (vL16b, off - 65536)

    def rd(dst, t, part):
        base, off = ring(t, part)
        A.ds(f"ds_read_b128 {v(dst,4)}, v{base}{doff(off)}", (t, part))

    def wo_dma(r, u):
        A.e(f"s_add_u32 m0, s{sWoL}, {1024*u}")
        A.e(f"s_add_u32 s{sT2}, s{sWoG}, {(112*r+16*u)*896}")
        return (f"buffer_load_dwordx4 v{vWoS}, s[{SWO}:{SWO+3}], s{sT2} offen lds", ("WO", r))

    def wo_rd(r, n):
        hd, s_, u = n >> 2, (n >> 1) & 1, n & 1
        base = vWoA0 if (s_ == 1 and u == 1) else vWoA
        dst = WO + 8 * (4 * r + hd) + 4 * s_ + 2 * u
        A.ds(f"ds_read_b64_tr_b16 {v(dst,2)}, v{base}{doff((28*hd+16*s_+8*u)*64)}", ("wo", r))

    vWoS = 104
    A.c("Wo staging source: (i>>2)*896 + (i&3)*16")
    A.e(f"v_lshrrev_b32 v{vT}, 2, v0")
    A.e(f"v_mul_u32_u24 v{vT}, 896, v{vT}")
    A.e(f"v_and_b32 v{vT2}, 3, v0")
    A.e(f"v_lshl_add_u32 v{vWoS}, v{vT2}, 4, v{vT}")

    A.label("k_attn")
    A.wait0()
    A.e("s_barrier")
    stamp("attn start", cyc=0)
    rd(vK, 0, 0); rd(vK + 4, 0, 1)
    A.wait(lg=[(0, 1)])
    A.e(mfma32(vS0, vK, vQ, vC))
    A.e(mfma32(vS0, vK + 4, vQ + 4, vS0))
    rd(vK, 1, 0); rd(vK + 4, 1, 1); rd(vV, 0, 2)
    A.e("s_nop 7")
    A.e("s_nop 3")
    for t in range(64):
        n, i = t >> 3, t & 7
        Sc = vS0 if t % 2 == 0 else vS1
        Sn = vS1 if t % 2 == 0 else vS0
        E = lambda r: A.e(f"v_exp_f32 v{Sc+r}, v{Sc+r}")
        C = lambda k: A.e(f"v_cvt_pk_bf16_f32 v{vP+k}, v{Sc+2*k}, v{Sc+2*k+1}")
        kvp = (n < 6 and i < 4)
        wod = []
        if n % 2 == 0 and i >= 4:
            wod = [2 * (i - 4), 2 * (i - 4) + 1] if i < 7 else [6]
        wor = []
        if n % 2 == 0 and n >= 2 and i < 4:
            wor = list(range(4 * i, 4 * i + 4))
        if o["prio"] and i % 2 == 0:
            A.e(f"s_setprio {3 - i // 2}")
        if kvp and i == 0:
            kv_m0(n + 2)
        tags = []
        if t < 63: tags.append((t + 1, 0))
        if t > 0: tags.append((t - 1, 3))
        A.wait(lg=tags)
        if t < 63:
            A.e(mfma32(Sn, vK, vQ, vC))
        if t + 2 < 64:
            rd(vK, t + 2, 0)
        E(0); E(1); E(2); C(0); E(3)
        if t > 0:
            A.e(mfma32(vO, vV + 4, vP + 4, vO))
        rd(vV + 4, t, 3)
        if kvp:
            kv_dma(n + 2, i)
        pend = None
        if wod:
            A.wait(lg=[("wo", n // 2 - 1)])
            pend = wo_dma(n // 2, wod[0])
        E(4)
        if pend:
            A.vmem(*pend)
        C(1); E(5); E(6); C(2); E(7)
        tags = [(t, 2)]
        if t < 63: tags.append((t + 1, 1))
        A.wait(lg=tags)
        if t < 63:
            A.e(mfma32(Sn, vK + 4, vQ + 4, Sn))
        if t + 2 < 64:
            rd(vK + 4, t + 2, 1)
        pend = None
        if len(wod) > 1:
            pend = wo_dma(n // 2, wod[1])
        E(8)
        if pend:
            A.vmem(*pend)
        C(3); E(9); E(10); C(4); E(11)
        A.e(mfma32(vO, vV, vP, None if t == 0 else vO))
        if t + 1 < 64:
            rd(vV, t + 1, 2)
        for x in wor:
            wo_rd(n // 2 - 1, x)
        E(12); C(5); E(13); E(14); E(15); C(6); C(7)
        if i == 7 and n < 6:
            a = A.vm.need(("KV", n + 2))
            b = A.lg.need((t, 3))
            A.e(waitcnt(a, b))
            A.e("s_barrier")
    A.wait(lg=[(63, 3)])
    A.e("s_nop 1")
    A.e(mfma32(vO, vV + 4, vP + 4, vO))
    if o["prio"]:
        A.e("s_setprio 0")
    stamp("attn end", cyc=1)

    A.e("s_nop 7")
    A.e("s_nop 3")
    vLs, vLt, vSum = TMP + 8, TMP + 9, TMP + 10
    A.e(f"v_mov_b32 v{vLs}, v{vO+12}")
    A.e(f"v_mov_b32 v{vLt}, v{vO+12}")
    A.e(f"v_add_f32 v{vSum}, v{vO}, v{vO+1}")
    A.e(f"v_add_f32 v{vSum}, v{vSum}, v{vO+2}")
    A.e(f"v_permlane32_swap_b32 v{vLs}, v{vLt}")
    for r in range(3, 16):
        A.e(f"v_add_f32 v{vSum}, v{vSum}, v{vO+r}")
    A.e(f"v_rcp_f32 v{vLs}, v{vLt}")
    A.c("row sum must lie in [2^-24, 2^100] and every accumulator must be finite, else redo with the true row maximum")
    A.e(f"s_mov_b32 s{sT}, 0x207")
    A.e(f"v_cmp_class_f32 vcc, v{vSum}, s{sT}")
    A.e(f"s_mov_b32 s{sT}, {fbits(2.0**-24)}")
    A.e(f"v_cmp_nle_f32 s[62:63], s{sT}, v{vLt}")
    A.e("s_or_b64 vcc, vcc, s[62:63]")
    A.e(f"s_mov_b32 s{sT}, {fbits(2.0**100)}")
    A.e(f"v_cmp_nge_f32 s[62:63], s{sT}, v{vLt}")
    A.e("s_or_b64 vcc, vcc, s[62:63]")
    A.e("s_cmp_lg_u64 vcc, 0")
    A.e(f"s_cselect_b32 s{sT}, 1, 0")
    A.e(f"s_cmp_eq_u32 s{sPass}, 0")
    A.e(f"s_cselect_b32 s{sT}, s{sT}, 0")
    A.e(f"v_mov_b32 v{vT}, s{sT}")
    A.e(f"s_lshl_b32 s3, s{sW}, 2")
    A.e(f"s_add_u32 s3, s3, {FAILW}")
    A.e(f"v_mov_b32 v{vT2}, s3")
    A.e("s_mov_b64 exec, 1")
    A.e(f"ds_write_b32 v{vT2}, v{vT}")
    A.e("s_mov_b64 exec, -1")
    for r in range(16):
        A.e(f"v_mul_f32 v{vO+r}, v{vO+r}, v{vLs}")
    for k in range(8):
        A.e(f"v_cvt_pk_bf16_f32 v{vP+k}, v{vO+2*k}, v{vO+2*k+1}")
    A.e("s_mov_b32 exec_lo, 0")
    A.e(f"v_mov_b32 v{vP+6}, 0")
    A.e(f"v_mov_b32 v{vP+7}, 0")
    A.e("s_mov_b32 exec_lo, -1")
    A.e(f"buffer_store_dwordx4 {v(vP,4)}, v{vL16}, s[{SWS}:{SWS+3}], s{sOst} offen sc1")
    A.e(f"buffer_store_dwordx4 {v(vP+4,4)}, v{vL16}, s[{SWS}:{SWS+3}], s{sOst} offen offset:1024 sc1")
    A.e(f"v_and_b32 v{vT}, 7, v0")
    A.e(f"v_lshlrev_b32 v{vT}, 2, v{vT}")
    A.e(f"v_add_u32 v{vT2}, {FAILW}, v{vT}")
    A.e(f"v_lshlrev_b32 v{vT}, 1, v{vT}")
    A.e("s_waitcnt lgkmcnt(0)")
    A.e("s_barrier")
    A.e(f"ds_read_b32 v{vT2}, v{vT2}")
    A.e("s_waitcnt vmcnt(0) lgkmcnt(0)")
    A.vm.drain(); A.lg.drain()
    A.e(f"v_cmp_ne_u32 vcc, 0, v{vT2}")
    A.e("s_cbranch_vccnz k_fallback")
    A.e("s_barrier")
    stamp("norm+drain")
    A.c("publish: one 8-byte tag per member b*4 + hg")
    A.e(f"s_cmp_eq_u32 s{sW}, 0")
    A.e("s_cbranch_scc0 k_noflag")
    A.e(f"s_lshl_b32 s3, s{sB}, 2")
    A.e(f"s_add_u32 s3, s3, s{sHG}")
    A.e("s_lshl_b32 s3, s3, 3")
    A.e(f"s_add_u32 s3, s3, s{sFlg}")
    A.e(f"v_mov_b32 v{vK}, s{sN}")
    A.e(f"v_mov_b32 v{vK+1}, s{sN+1}")
    A.e(f"v_mov_b32 v{TMP}, 0")
    A.e("s_mov_b64 exec, 1")
    A.e(f"buffer_store_dwordx2 v[{vK}:{vK+1}], v{TMP}, s[{SWS}:{SWS+3}], s3 offen sc1")
    A.e("s_mov_b64 exec, -1")
    A.label("k_noflag")
    for x in range(16):
        wo_rd(3, x)
    A.e(f"s_cmp_eq_u32 s{sW}, 0")
    A.e("s_cbranch_scc0 k_nopoll")
    A.e(f"s_mov_b32 s{sCnt}, 0")
    A.label("k_poll")
    A.e(f"buffer_load_dwordx2 v[{vK+2}:{vK+3}], v{vT}, s[{SWS}:{SWS+3}], s{sFlg} offen sc1")
    A.e(f"s_add_u32 s{sCnt}, s{sCnt}, 1")
    A.e("s_waitcnt vmcnt(0)")
    A.e(f"v_cmp_ne_u64 vcc, s[{sN}:{sN+1}], v[{vK+2}:{vK+3}]")
    A.e("s_cbranch_vccz k_pollok")
    A.e(f"s_cmp_lt_u32 s{sCnt}, 0x40000")
    A.e("s_cbranch_scc1 k_poll")
    A.label("k_pollok")
    A.c("every block has read the seed by now (each member passed its K/V wait): block 0 advances it to this launch's tag")
    A.e("s_cmp_eq_u32 s2, 0")
    A.e("s_cbranch_scc0 k_nopoll")
    A.e(f"s_mov_b32 s3, {SEED_OFF}")
    A.e("s_mov_b64 exec, 1")
    A.e(f"buffer_store_dwordx2 v[{vK}:{vK+1}], v{TMP}, s[{SWS}:{SWS+3}], s3 offen sc1")
    A.e("s_mov_b64 exec, -1")
    A.label("k_nopoll")
    A.e("s_barrier")
    stamp("poll")
    A.c("o fragments: wave loads branch bb, head 4*stage + ct; LDS image [bb][head][s][lane]")
    A.e(f"s_lshl_b32 s3, s{sBB}, 15")
    A.e(f"s_lshl_b32 s{sT}, s{sCT}, 11")
    A.e(f"s_add_u32 s3, s3, s{sT}")
    A.e(f"s_add_u32 s{sT}, s3, s{sOld}")
    for st in range(4):
        A.e(f"s_add_u32 m0, s3, {8192*st}")
        A.e(f"s_add_u32 s{sT2}, s{sT}, {8192*st}")
        for k in range(2):
            A.vmem(f"buffer_load_dwordx4 v{vL16}, s[{SWS}:{SWS+3}], s{sT2} offen{boff(1024*k)} sc1 lds", ("O", st))
    A.c("gate value of the output rows: g[64mt + 32b + (l&31)]")
    A.e(f"v_and_b32 v{vT}, 31, v0")
    A.e(f"v_lshlrev_b32 v{vT}, 2, v{vT}")
    A.e(f"s_lshl_b32 s3, s{sMT}, 8")
    A.e(f"s_lshl_b32 s{sT}, s{sB}, 7")
    A.e(f"s_add_u32 s3, s3, s{sT}")
    A.e(f"s_add_u32 s3, s3, {G_OFF}")
    A.vmem(f"buffer_load_dword v{vG}, v{vT}, s[{SWS}:{SWS+3}], s3 offen sc1", "g")
    vOb = TMP + 11
    A.e(f"s_lshl_b32 s3, s{sBB}, 15")
    A.e(f"v_add_u32 v{vOb}, s3, v{vL16}")
    ACC = vC
    OB = [16, 48]

    def o_mfma(st):
        b0 = OB[st & 1]
        for hd in range(4):
            for s_ in range(2):
                H = 4 * st + hd
                A.e(mfma32(ACC, WO + 8 * H + 4 * s_, b0 + 8 * hd + 4 * s_, None if (st == 0 and hd == 0 and s_ == 0) else ACC))
    for st in range(4):
        A.wait(vm=[("O", st)])
        A.e("s_barrier")
        b0 = OB[st & 1]
        for hd in range(4):
            for s_ in range(2):
                A.ds(f"ds_read_b128 {v(b0+8*hd+4*s_,4)}, v{vOb}{doff((4*st+hd)*2048+s_*1024)}", ("ob", st))
        if st > 0:
            o_mfma(st - 1)
        A.wait(lg=[("ob", st)])
    o_mfma(3)
    A.c("exchange halves with the wave of the other branch")
    A.e(f"s_lshl_b32 s3, s{sW}, 11")
    A.e(f"s_add_u32 s3, s3, {XCH}")
    A.e(f"v_add_u32 v{vT}, s3, v{vL16}")
    A.e(f"s_xor_b32 s3, s{sW}, 4")
    A.e("s_lshl_b32 s3, s3, 11")
    A.e(f"s_add_u32 s3, s3, {XCH}")
    A.e(f"v_add_u32 v{vT2}, s3, v{vL16}")
    A.c("output offset: (64mt + 32b + (l&31))*896 + (112hg + 32ct + 16bb + 8h)*2")
    vOut = TMP + 12
    A.e(f"v_and_b32 v{vOut}, 31, v0")
    A.e(f"v_mul_u32_u24 v{vOut}, 896, v{vOut}")
    A.e(f"v_lshrrev_b32 v{TMP}, 5, v0")
    A.e(f"v_lshl_add_u32 v{vOut}, v{TMP}, 4, v{vOut}")
    A.e(f"s_lshl_b32 s3, s{sMT}, 1")
    A.e(f"s_add_u32 s3, s3, s{sB}")
    A.e(f"s_mul_i32 s3, s3, {32*896}")
    A.e(f"s_lshl_b32 s{sT}, s{sBB}, 5")
    A.e(f"s_add_u32 s3, s3, s{sT}")
    A.e(f"s_add_u32 s{sT}, s3, s{sWoG}")
    A.c("scale: g for branch A, 1 - g for branch B")
    A.wait(vm=["g"])
    A.e(f"v_sub_f32 v{TMP+1}, 1.0, v{vG}")
    A.e(f"s_cmp_eq_u32 s{sBB}, 0")
    A.e("s_cselect_b64 vcc, -1, 0")
    A.e(f"v_cndmask_b32 v{vG}, v{TMP+1}, v{vG}, vcc")
    for r in range(16):
        A.e(f"v_mul_f32 v{ACC+r}, v{ACC+r}, v{vG}")
    A.e(f"s_cmp_eq_u32 s{sBB}, 0")
    A.e("s_cbranch_scc0 k_xb")
    A.e(f"ds_write_b128 v{vT}, {v(ACC+8,4)}")
    A.e(f"ds_write_b128 v{vT}, {v(ACC+12,4)} offset:1024")
    for r in range(8):
        A.e(f"v_mov_b32 v{16+r}, v{ACC+r}")
    A.e("s_branch k_xj")
    A.label("k_xb")
    A.e(f"ds_write_b128 v{vT}, {v(ACC,4)}")
    A.e(f"ds_write_b128 v{vT}, {v(ACC+4,4)} offset:1024")
    for r in range(8):
        A.e(f"v_mov_b32 v{16+r}, v{ACC+8+r}")
    A.label("k_xj")
    A.e("s_waitcnt lgkmcnt(0)")
    A.e("s_barrier")
    A.e(f"ds_read_b128 v[24:27], v{vT2}")
    A.e(f"ds_read_b128 v[28:31], v{vT2} offset:1024")
    A.e("s_waitcnt lgkmcnt(0)")
    for r in range(8):
        A.e(f"v_add_f32 v{16+r}, v{16+r}, v{24+r}")
    for k in range(4):
        A.e(f"v_cvt_pk_bf16_f32 v{24+k}, v{16+2*k}, v{16+2*k+1}")
    A.e("s_nop 1")
    A.e("v_permlane32_swap_b32 v24, v26")
    A.e("v_permlane32_swap_b32 v25, v27")
    A.e(f"s_cmp_eq_u32 s{sW}, 7")
    A.e("s_cbranch_scc1 k_nostore")
    A.e(f"buffer_store_dwordx4 v[24:27], v{vOut}, s[{SOUT}:{SOUT+3}], s{sT} offen")
    A.label("k_nostore")
    if prof:
        A.e("s_waitcnt vmcnt(0)")
        stamp("end")
        if o.get("dbgst"):
            A.e(f"s_cmp_eq_u32 s{sW}, {o.get('dbgw', 0)}")
            A.e("s_cbranch_scc0 k_end")
            A.e("s_load_dwordx2 s[28:29], s[0:1], 96")
            A.e("s_mov_b32 s30, 256")
            A.e("s_mov_b32 s31, 0x20000")
            A.e("s_waitcnt lgkmcnt(0)")
            A.e("s_mov_b64 exec, 1")
            A.e("v_mov_b32 v1, 0")
            for k in range(min(16, len(names))):
                if o["dbgst"] == 1:
                    A.e(f"s_not_b32 s3, s{sProf}" if k == 0 else f"s_mov_b32 s3, s{sProf+k}")
                    A.e("v_mov_b32 v2, s3")
                    A.e(f"buffer_atomic_umax v2, v1, s[28:31], 0 offen{boff(4*k)}")
                else:
                    A.e("s_mov_b32 s3, 1" if k == 0 else f"s_sub_u32 s3, s{sProf+k}, s{sProf}")
                    A.e("v_mov_b32 v2, s3")
                    A.e(f"buffer_atomic_add v2, v1, s[28:31], 0 offen{boff(4*k)}")
                A.e("s_waitcnt vmcnt(0)")
            A.e("s_branch k_end")
        A.e("s_lshl_b32 s3, s2, 3")
        A.e(f"s_add_u32 s3, s3, s{sW}")
        A.e("s_lshl_b32 s3, s3, 7")
        A.e(f"s_add_u32 s3, s3, {PROF_OFF}")
        A.e(f"s_mov_b32 s{SWS+2}, 0x800000")
        A.e("s_mov_b64 exec, 1")
        A.e("v_mov_b32 v1, 0")
        for k in range(18):
            A.e(f"v_mov_b32 v2, s{sProf+k}")
            A.e(f"buffer_store_dword v2, v1, s[{SWS}:{SWS+3}], s3 offen{boff(4*k)}")
            A.e("s_waitcnt vmcnt(0)")
    A.e("s_branch k_end")

    A.label("k_fallback")
    A.e(f"s_mov_b32 s{sPass}, 1")
    vM = TMP + 8
    A.e(f"v_mov_b32 v{vM}, 0xff800000")
    A.e(f"s_mov_b32 s{sT}, 0")
    A.label("k_maxloop")
    A.e(f"buffer_load_dwordx4 {v(vK,4)}, v{vL16}, s[{SKV}:{SKV+3}], s{sT} offen sc1")
    A.e(f"buffer_load_dwordx4 {v(vK+4,4)}, v{vL16}, s[{SKV}:{SKV+3}], s{sT} offen offset:1024 sc1")
    A.e("s_waitcnt vmcnt(0)")
    A.e(mfma32(vS0, vK, vQ, None))
    A.e(mfma32(vS0, vK + 4, vQ + 4, vS0))
    A.e(f"s_add_u32 s{sT}, s{sT}, 4096")
    A.e("s_nop 7")
    A.e("s_nop 3")
    for k in range(8):
        A.e(f"v_max3_f32 v{vM}, v{vS0+2*k}, v{vS0+2*k+1}, v{vM}")
    A.e(f"s_cmp_lt_u32 s{sT}, 0x40000")
    A.e("s_cbranch_scc1 k_maxloop")
    A.e(f"v_mov_b32 v{vM+1}, v{vM}")
    A.e("s_nop 1")
    A.e(f"v_permlane32_swap_b32 v{vM}, v{vM+1}")
    A.e("s_nop 1")
    A.e(f"v_max_f32 v{vM}, v{vM}, v{vM+1}")
    for r in range(16):
        A.e(f"v_sub_f32 v{vC+r}, 0, v{vM}")
    A.e("s_barrier")
    for ch in range(2):
        kv_m0(ch)
        A.e("s_nop 0")
        for k in range(4):
            kv_dma(ch, k)
    A.e("s_branch k_attn")
    A.label("k_end")
    A.e("s_endpgm")
    return A.text(), names


HEADER = """; Gated mix of two multi-query attention branches, S=2048, D=448, H=16, Dh=28, one launch.
; @launch grid=(256,1,1) block=(512,1,1) lds={l}
.amdgcn_target "amdgcn-amd-amdhsa--gfx950"
.text
"""

KD = """.amdhsa_kernel {name}
  .amdhsa_next_free_vgpr {nv}
  .amdhsa_next_free_sgpr 102
  .amdhsa_accum_offset {nv}
  .amdhsa_group_segment_fixed_size 0
  .amdhsa_kernarg_size 112
  .amdhsa_user_sgpr_count 2
  .amdhsa_user_sgpr_kernarg_segment_ptr 1
  .amdhsa_system_sgpr_workgroup_id_x 1
.end_amdhsa_kernel
"""


def build(prof=False, opts=None):
    body, names = gen(prof, opts)
    t = HEADER.format(l=LDS)
    if prof:
        t += "; stamps: " + ",".join(names) + "\n"
    t += f".globl {KN}\n.p2align 8\n.type {KN},@function\n{KN}:\n" + body
    t += '.section .rodata,"a"\n.p2align 6\n' + KD.format(name=KN, nv=256)
    return t


if __name__ == "__main__":
    out = sys.argv[1] if len(sys.argv) > 1 else f"cdna_kernels/{NAME}.s"
    prof = "prof" in sys.argv[2:]
    opts = {}
    for a_ in sys.argv[2:]:
        if "=" in a_:
            k_, v_ = a_.split("=")
            opts[k_] = int(v_)
    open(out, "w").write(build(prof, opts))
    print("wrote", out)
```

```python
import sys
sys.path.insert(0, "gen")
from asmlib import *

NAME = "gated_mix__grouped_kv_mqa__grouped_kv_mqa__prompt"
KN = NAME + "_kernel"

KV_OFF, G_OFF, SEED_OFF, FLAG_OFF, KVF_OFF, O_OFF, WS_USED = 0x0, 0x80000, 0x83000, 0x84000, 0x88000, 0x100000, 0x500000
TAG_HI, TAG_LO = 0x9E3779B9, 0x7F4A7C15
PROF_OFF = 0x600000
X_BYTES, W_BYTES, WK_BYTES = 2048 * 896, 448 * 896, 448 * 56
LOG2E = 1.4426950408889634


def fbits(x):
    import struct
    return "0x%08x" % struct.unpack("<I", struct.pack("<f", x))[0]


class Cnt:
    def __init__(self, cap):
        self.q, self.cap = [], cap

    def issue(self, tag):
        self.q.append(tag)

    def need(self, *tags):
        idx = -1
        for t in tags:
            for i, x in enumerate(self.q):
                if x == t:
                    idx = max(idx, i)
        if idx < 0:
            return None
        n = min(len(self.q) - idx - 1, self.cap)
        self.q = self.q[len(self.q) - n:] if n else []
        return n

    def drain(self):
        self.q = []


class K(Asm):
    def __init__(self):
        super().__init__()
        self.vm, self.lg = Cnt(63), Cnt(15)

    def wait(self, vm=(), lg=()):
        a = self.vm.need(*vm) if vm else None
        b = self.lg.need(*lg) if lg else None
        if a is not None or b is not None:
            self.e(waitcnt(a, b))

    def wait0(self, vm=True, lg=True):
        self.e(waitcnt(0 if vm else None, 0 if lg else None))
        if vm: self.vm.drain()
        if lg: self.lg.drain()

    def ds(self, text, tag):
        self.e(text); self.lg.issue(tag)

    def vmem(self, text, tag):
        self.e(text); self.vm.issue(tag)

    def srd(self, d, lo, hi, n):
        self.e(f"s_mov_b32 s{d}, s{lo}")
        self.e(f"s_mov_b32 s{d+1}, s{hi}")
        self.e(f"s_mov_b32 s{d+2}, {n}")
        self.e(f"s_mov_b32 s{d+3}, 0x20000")


def boff(n):
    assert 0 <= n < 4096, n
    return f" offset:{n}" if n else ""


def doff(n):
    assert 0 <= n < 65536, n
    return f" offset:{n}" if n else ""


LDS = 163840
WA = 0
XL = 71936
GL = 158208
CNT = 159232
KVR = 129280
WO_L = 98304
FAILW = 159744
XCH = 65536


def gen(prof=False, opts=None):
    o = dict(prio=True, R=16, pub=-1, s1c=3, s2c=3, l0=3, ost=0, pf=1, pc=2, b0=1, ilv=1, pads=1, b0l=0, kvprio=3, dbgs=0)
    o.update(opts or {})
    R = o["R"]
    A = K()
    SX, SWQ, SKV, SWO, SWS, SOUT, SWK, SG = 16, 20, 24, 28, 32, 36, 88, 92
    sW, sB, sMT, sHG, sQT, sHL, sCT, sBB = 40, 41, 42, 43, 44, 45, 46, 47
    sKVL, sWoL, sWoG, sT, sT2, sPass, sCnt, sOst, sFlg, sOld = 48, 49, 50, 51, 52, 53, 54, 55, 56, 57
    sWl0, sXl, sXg, sT3 = 58, 59, 60, 61
    sProf, sCyc, sN = 64, 80, 100
    vL16, vL16b, vT, vT2, vG, vWoA, vWoA0 = 1, 2, 3, 4, 5, 6, 7
    vQ, vS0, vS1, vP, vO, vK, vV, vC = 8, 16, 32, 48, 56, 72, 80, 88
    TMP, WO = 104, 128
    names = ["start", "kernarg", "B0", "crit", "partials", "kv stored", "S1", "pub", "S2", "w56", "S3", "qproj", "attn start", "attn end", "norm+drain", "poll", "end"]

    def stamp(name, cyc=None):
        if prof:
            A.e("s_memrealtime s[96:97]")
            if cyc is not None:
                A.e("s_memtime s[98:99]")
            A.e("s_waitcnt lgkmcnt(0)")
            A.e(f"s_mov_b32 s{sProf+names.index(name)}, s96")
            if cyc is not None:
                A.e(f"s_mov_b32 s{sCyc+cyc}, s98")

    sKst, sGst, sGg, sGl, sKl, sKg = 82, 83, 84, 85, 86, 87
    sWg = 87
    vXe, vXo, vW0, vW1, vWa, vWa4, vWa5, vWoS, vXa = 104, 105, 106, 107, 108, 109, 110, 111, 112
    vU, vU2, vCn, vOne, vTr, vXk, vGa, vPart, vRed = 116, 117, 118, 119, 120, 121, 125, 126, 127
    WF, XF, KACC, RD = 192, 224, 16, 128
    sKFp, sKF = 4, 5
    vPoll = vK
    QB = [128, 160]

    A.e("s_cmp_ge_u32 s2, 256")
    A.e("s_cbranch_scc1 k_end")
    A.e(f"s_and_b32 s{sB}, s2, 1")
    A.e(f"s_mul_i32 s3, s{sB}, 40")
    A.e(f"s_load_dwordx2 s[{SX}:{SX+1}], s[0:1], 0")
    A.e(f"s_bfe_u32 s{sHG}, s2, 0x20003")
    A.e(f"s_lshr_b32 s{sT}, s{sHG}, 1")
    A.e(f"s_lshl_b32 s{sT}, s{sT}, 3")
    A.e(f"s_add_u32 s{sT}, s{sT}, s3")
    A.e(f"s_add_u32 s{sT}, s{sT}, 16")
    A.e(f"s_load_dwordx2 s[{SWK}:{SWK+1}], s[0:1], s{sT}")
    A.e(f"s_load_dwordx2 s[{SG}:{SG+1}], s[0:1], 80")
    A.e("s_add_u32 s3, s3, 8")
    A.e(f"s_load_dwordx2 s[6:7], s[0:1], s3")
    A.e("s_load_dwordx2 s[14:15], s[0:1], 104")
    A.e("s_load_dwordx2 s[8:9], s[0:1], 32")
    A.e("s_load_dwordx2 s[10:11], s[0:1], 72")
    A.e("s_load_dwordx2 s[12:13], s[0:1], 88")
    if prof:
        A.e("s_memrealtime s[96:97]")
    A.e("v_lshrrev_b32 v1, 6, v0")
    A.e("v_and_b32 v0, 63, v0")
    A.e(f"v_readfirstlane_b32 s{sW}, v1")
    if o["pads"]:
        A.c("instruction cache warm-up: single waves visit code that is needed shortly and come back")
        A.e(f"s_cmp_eq_u32 s{sW}, 7")
        A.e("s_cbranch_scc1 k_pad_w1")
        A.label("k_pad_w1_ret")
    A.c("mt = 8*((id&7)>>1) + (id>>5), hg = (id>>3)&3")
    A.e("s_bfe_u32 s3, s2, 0x20001")
    A.e("s_lshl_b32 s3, s3, 3")
    A.e(f"s_lshr_b32 s{sMT}, s2, 5")
    A.e(f"s_add_u32 s{sMT}, s{sMT}, s3")
    A.e(f"v_lshlrev_b32 v{vL16}, 4, v0")
    A.c("x source of DMA r (8 rows): (i>>3)*896 + (((i&7) ^ (4(r&1) + (i>>4)))*16)")
    A.e(f"v_lshrrev_b32 v{vT}, 4, v0")
    A.e(f"v_and_b32 v{vT2}, 7, v0")
    A.e(f"v_xor_b32 v{vT}, v{vT}, v{vT2}")
    A.e(f"v_lshlrev_b32 v{vT}, 4, v{vT}")
    A.e(f"v_lshrrev_b32 v{vT2}, 3, v0")
    A.e(f"v_mul_u32_u24 v{vT2}, 896, v{vT2}")
    A.e(f"v_add_u32 v{vXe}, v{vT}, v{vT2}")
    A.e(f"s_mul_i32 s{sXg}, s{sMT}, {64*896}")
    A.e(f"s_and_b32 s{sT3}, s{sHG}, 1")
    A.e(f"s_mov_b32 s{SX+2}, {X_BYTES}")
    A.e(f"s_mov_b32 s{SX+3}, 0x20000")
    A.c("LDS counters of the K/V waves start at zero; the first barrier orders this in front of their use")
    A.e(f"v_mov_b32 v{vCn}, {CNT}")
    for r in range(4):
        A.e(f"v_mov_b32 v{vP+r}, 0")
    A.e("s_mov_b64 exec, 1")
    A.e(f"ds_write_b128 v{vCn}, {v(vP,4)}")
    A.e("s_mov_b64 exec, -1")
    A.e(f"v_mov_b32 v{vOne}, 1")
    if prof:
        A.e(f"s_mov_b32 s{sProf+1}, 0")
        for k in range(2, 18):
            A.e(f"s_mov_b32 s{sProf+k}, 0")
    A.e(f"s_cmp_ge_u32 s{sW}, 4")
    A.e("s_cbranch_scc1 k_loader")

    def prof_init():
        if prof:
            A.e(f"s_mov_b32 s{sProf}, s96")

    def split_parts(fn, n):
        saved, A.lines = A.lines, []
        fn()
        got, A.lines = A.lines, saved
        parts, per = [], -(-len(got) // n)
        i = 0
        while i < len(got):
            j = min(i + per, len(got))
            while j < len(got) and any(k in got[j] for k in ("s_addc_u32", "s_cselect")):
                j += 1
            parts.append(got[i:j])
            i = j
        return parts + [[]] * (n - len(parts))

    def setup_common():
        A.srd(SWS, 14, 15, WS_USED)
        A.e(f"s_lshl_b32 s3, s{sB}, 18")
        A.e(f"s_add_u32 s{SKV}, s14, s3")
        A.e(f"s_addc_u32 s{SKV+1}, s15, 0")
        A.e(f"s_mov_b32 s{SKV+2}, 0x40000")
        A.e(f"s_mov_b32 s{SKV+3}, 0x20000")
        A.e(f"s_and_b32 s{sQT}, s{sW}, 1")
        A.e(f"s_lshr_b32 s{sHL}, s{sW}, 1")
        A.e(f"s_and_b32 s{sCT}, s{sW}, 3")
        A.e(f"s_lshr_b32 s{sBB}, s{sW}, 2")
        A.e(f"s_cmp_eq_u32 s{sBB}, 0")
        A.e(f"s_cselect_b32 s{SWO}, s8, s10")
        A.e(f"s_cselect_b32 s{SWO+1}, s9, s11")
        A.e(f"s_mov_b32 s{SWO+2}, {W_BYTES}")
        A.e(f"s_mov_b32 s{SWO+3}, 0x20000")
        A.srd(SOUT, 12, 13, X_BYTES)
        A.e(f"s_lshl_b32 s{sKVL}, s{sW}, 12")
        A.e(f"s_mul_i32 s{sWoG}, s{sHG}, 224")
        A.e(f"s_lshl_b32 s3, s{sCT}, 6")
        A.e(f"s_add_u32 s{sWoG}, s{sWoG}, s3")
        A.e(f"s_mov_b32 s{sPass}, 0")
        A.c("x fragment read: q*128 + (((2st+h) ^ ((q>>1)&7))*16), q = l&31")
        A.e(f"v_lshrrev_b32 v{vT}, 5, v0")
        A.e(f"v_and_b32 v{vU}, 31, v0")
        A.e(f"v_bfe_u32 v{vU2}, v0, 1, 3")
        A.e(f"v_xor_b32 v{vU2}, v{vU2}, v{vT}")
        A.e(f"v_lshlrev_b32 v{vU2}, 4, v{vU2}")
        A.e(f"v_lshl_add_u32 v{vXk}, v{vU}, 7, v{vU2}")
        A.e(f"s_lshl_b32 s3, s{sQT}, 12")
        A.e(f"s_add_u32 s3, s3, {XL}")
        A.e(f"v_add_u32 v{vXa}, s3, v{vXk}")
        for st in range(1, 4):
            A.e(f"v_xor_b32 v{vXa+st}, {st << 5}, v{vXa}")
        A.c("lane part of the transposed reads: 32(g&1) + 8(i&3)")
        A.e(f"v_bfe_u32 v{vT2}, v0, 4, 1")
        A.e(f"v_lshlrev_b32 v{vT2}, 5, v{vT2}")
        A.e(f"v_and_b32 v{vU}, 3, v0")
        A.e(f"v_lshl_add_u32 v{vT2}, v{vU}, 3, v{vT2}")
        A.c("W_q transposed read: (8h + 2(i>>2))*224 + 56hl + 32(g&1) + 8(i&3)")
        A.e(f"v_bfe_u32 v{vU}, v0, 2, 2")
        A.e(f"v_lshlrev_b32 v{vU2}, 1, v{vU}")
        A.e(f"v_lshl_add_u32 v{vU2}, v{vT}, 3, v{vU2}")
        A.e(f"v_mul_u32_u24 v{vWa}, 224, v{vU2}")
        A.e(f"v_add_u32 v{vWa}, v{vWa}, v{vT2}")
        A.e(f"s_mul_i32 s3, s{sHL}, 56")
        A.e(f"v_add_u32 v{vWa}, s3, v{vWa}")
        A.e(f"v_add_u32 v{vWa4}, {WA + 4*14336}, v{vWa}")
        A.e(f"v_add_u32 v{vWa5}, {KVR}, v{vWa}")
        A.c("Wo transposed read: WoL + (4h + (i>>2))*64 + 32(g&1) + 8(i&3); variant with h = 0 for the padded rows")
        A.e(f"s_mul_i32 s{sWoL}, s{sW}, 7168")
        A.e(f"s_add_u32 s{sWoL}, s{sWoL}, {WO_L}")
        A.e(f"v_lshl_add_u32 v{vWoA0}, v{vU}, 6, v{vT2}")
        A.e(f"v_add_u32 v{vWoA0}, s{sWoL}, v{vWoA0}")
        A.e(f"v_lshl_add_u32 v{vWoA}, v{vT}, 8, v{vWoA0}")
        A.c("W_k / W_v transposed read, wave-relative: (8h + (i>>2))*56 + 32(g&1) + 8(i&3)")
        A.e(f"v_lshl_add_u32 v{vTr}, v{vT}, 3, v{vU}")
        A.e(f"v_mul_u32_u24 v{vTr}, 56, v{vTr}")
        A.e(f"v_add_u32 v{vTr}, v{vTr}, v{vT2}")
        A.e(f"v_lshlrev_b32 v{vGa}, 4, v{vT}")
        A.c("Wo staging source: (i>>2)*896 + (i&3)*16")
        A.e(f"v_lshrrev_b32 v{vT}, 2, v0")
        A.e(f"v_mul_u32_u24 v{vT}, 896, v{vT}")
        A.e(f"v_and_b32 v{vT2}, 3, v0")
        A.e(f"v_lshl_add_u32 v{vWoS}, v{vT2}, 4, v{vT}")
        A.c("K/V flags: slot 16(mt&7) + 4(mt>>3) + hg of this block (s4) and the replica it polls (s5)")
        A.e(f"s_mul_i32 s{sKF}, s{sB}, {R*1024}")
        A.e(f"s_add_u32 s{sKF}, s{sKF}, {KVF_OFF}")
        A.e(f"s_and_b32 s3, s{sMT}, 7")
        A.e("s_lshl_b32 s3, s3, 2")
        A.e(f"s_lshr_b32 s{sT}, s{sMT}, 3")
        A.e(f"s_add_u32 s3, s3, s{sT}")
        A.e("s_lshl_b32 s3, s3, 2")
        A.e(f"s_add_u32 s{sT}, s3, s{sHG}")
        A.e(f"s_lshl_b32 s{sT}, s{sT}, 3")
        A.e(f"s_add_u32 s{sKFp}, s{sT}, s{sKF}")
        A.c("K/V image of this block: b*262144 + (8(mt&7) + 2(mt>>3) + half)*4096 + 2048 kv")
        A.e("s_lshr_b32 s3, s3, 1")
        A.e(f"s_add_u32 s3, s3, s{sT3}")
        A.e("s_lshl_b32 s3, s3, 12")
        A.e(f"s_lshl_b32 s{sT}, s{sB}, 18")
        A.e(f"s_add_u32 s3, s3, s{sT}")
        A.e(f"s_lshr_b32 s{sT}, s{sHG}, 1")
        A.e(f"s_lshl_b32 s{sT}, s{sT}, 11")
        A.e(f"s_add_u32 s{sKst}, s3, s{sT}")
        A.e(f"s_lshr_b32 s3, s2, 1")
        A.e(f"s_and_b32 s3, s3, {R-1}")
        A.e("s_lshl_b32 s3, s3, 10")
        A.e(f"s_add_u32 s{sKF}, s{sKF}, s3")
        A.c("o image of this wave: O_OFF + ((mt*2+qt)*2+b)*32768 + head*2048")
        A.e(f"s_lshl_b32 s3, s{sMT}, 1")
        A.e(f"s_add_u32 s{sGst}, s3, s{sT3}")
        A.e(f"s_lshl_b32 s{sGst}, s{sGst}, 7")
        A.e(f"s_add_u32 s{sGst}, s{sGst}, {G_OFF}")
        A.e(f"s_add_u32 s3, s3, s{sQT}")
        A.e("s_lshl_b32 s3, s3, 1")
        A.e(f"s_add_u32 s3, s3, s{sB}")
        A.e("s_lshl_b32 s3, s3, 15")
        A.e(f"s_lshl_b32 s{sT}, s{sHG}, 2")
        A.e(f"s_add_u32 s{sT}, s{sT}, s{sHL}")
        A.e(f"s_lshl_b32 s{sT}, s{sT}, 11")
        A.e(f"s_add_u32 s3, s3, s{sT}")
        A.e(f"s_add_u32 s{sOst}, s3, {O_OFF}")
        A.c("flag line of this row block; o images consumed: q-tile b of block mt")
        A.e(f"s_lshl_b32 s{sFlg}, s{sMT}, 7")
        A.e(f"s_add_u32 s{sFlg}, s{sFlg}, {FLAG_OFF}")
        A.e(f"s_lshl_b32 s3, s{sMT}, 1")
        A.e(f"s_add_u32 s3, s3, s{sB}")
        A.e("s_lshl_b32 s3, s3, 16")
        A.e(f"s_add_u32 s{sOld}, s3, {O_OFF}")
        A.e(f"v_add_u32 v{vL16b}, 0x10000, v{vL16}")
        for r in range(16):
            A.e(f"v_mov_b32 v{vC+r}, 0")

    sD = 62
    def x_dma(vsrc, dl, dg):
        A.e(f"s_add_u32 m0, s{sXl}, {dl}")
        A.e(f"s_add_u32 s{sD}, s{sXg}, {dg}")
        A.e(f"buffer_load_dwordx4 v{vsrc}, s[{SX}:{SX+3}], s{sD} offen lds")

    A.c("wave w contracts over x chunks 2w, 2w+1 (wave 3: chunk 6) of the 32 rows of this block's tile (half = hg&1)")
    if o["kvprio"]:
        A.e(f"s_setprio {o['kvprio']}")
    A.e(f"v_xor_b32 v{vXo}, 64, v{vXe}")
    A.e(f"s_mul_i32 s{sT}, s{sT3}, {32*896}")
    A.e(f"s_add_u32 s{sXg}, s{sXg}, s{sT}")
    A.e(f"s_lshl_b32 s{sGg}, s{sW}, 8")
    A.e(f"s_add_u32 s{sXg}, s{sXg}, s{sGg}")
    A.e(f"s_add_u32 s{sGl}, s{sGg}, {GL}")
    A.e(f"s_lshl_b32 s{sXl}, s{sW}, 14")
    A.e(f"s_lshl_b32 s{sT}, s{sT3}, 12")
    A.e(f"s_add_u32 s{sXl}, s{sXl}, s{sT}")
    A.e(f"s_add_u32 s{sXl}, s{sXl}, {XL}")
    A.e(f"s_mul_i32 s{sKg}, s{sW}, 7168")
    A.e(f"s_add_u32 s{sKl}, s{sKg}, {KVR}")
    A.e(f"s_mov_b32 s{SWK+2}, {WK_BYTES}")
    A.e(f"s_mov_b32 s{SWK+3}, 0x20000")
    A.e(f"s_mov_b32 s{SG+2}, 896")
    A.e(f"s_mov_b32 s{SG+3}, 0x20000")
    A.e(f"s_mov_b32 m0, s{sKl}")
    A.e("s_waitcnt lgkmcnt(0)")
    prof_init()
    stamp("kernarg")
    for u in range(4):
        A.e(f"buffer_load_dwordx4 v{vL16}, s[{SWK}:{SWK+3}], s{sKg} offen{boff(1024*u)} lds")
    for k in range(4):
        x_dma(vXo if k & 1 else vXe, 1024 * k, 7168 * k)
    A.e(f"s_mov_b32 m0, s{sGl}")
    A.e("s_mov_b64 exec, 0xffff")
    A.e(f"buffer_load_dwordx4 v{vL16}, s[{SG}:{SG+3}], s{sGg} offen lds")
    A.e("s_mov_b64 exec, -1")
    if o["b0"] == 0:
        A.e("s_barrier")
    A.e(f"s_cmp_eq_u32 s{sW}, 3")
    A.e("s_cbranch_scc1 k_crit1")
    for k in range(4):
        x_dma(vXo if k & 1 else vXe, 8192 + 1024 * k, 128 + 7168 * k)
    A.e(f"s_add_u32 m0, s{sKl}, 4096")
    A.e(f"s_add_u32 s{sT}, s{sKg}, 4096")
    for u in range(3):
        A.e(f"buffer_load_dwordx4 v{vL16}, s[{SWK}:{SWK+3}], s{sT} offen{boff(1024*u)} lds")
    A.label("k_crit1")
    A.c("seed word of the hand-off tag")
    A.srd(SWS, 14, 15, WS_USED)
    A.e(f"v_mov_b32 v{vU}, 0")
    A.e(f"s_mov_b32 s3, {SEED_OFF}")
    A.e(f"buffer_load_dwordx2 v[{vP}:{vP+1}], v{vU}, s[{SWS}:{SWS+3}], s3 offen sc1")
    if o["b0"] == 1:
        A.e("s_barrier")
    stamp("B0")
    if o["pads"]:
        A.e(f"s_cmp_eq_u32 s{sW}, 1")
        A.e("s_cbranch_scc1 k_pad_kv2")
        A.e(f"s_cmp_eq_u32 s{sW}, 2")
        A.e("s_cbranch_scc1 k_pad_kv3")
        A.e(f"s_cmp_eq_u32 s{sW}, 3")
        A.e("s_cbranch_scc1 k_pad_s1")
    A.e("s_branch k_kv")

    def kv_job():
        setup_common()
        A.e(f"v_add_u32 v{vTr}, s{sKl}, v{vTr}")
        A.e(f"v_add_u32 v{vPart}, s{sKl}, v{vL16}")
        A.e(f"v_add_u32 v{vGa}, s{sGl}, v{vGa}")
        A.e(f"v_add_u32 v{vXk}, s{sXl}, v{vXk}")
        for st in range(1, 4):
            A.e(f"v_xor_b32 v{vXk+st}, {st << 5}, v{vXk}")
        A.c("reducer q = w reads registers 4q..4q+3 of every partial")
        A.e(f"s_lshl_b32 s3, s{sW}, 10")
        A.e(f"s_add_u32 s3, s3, {KVR}")
        A.e(f"v_add_u32 v{vRed}, s3, v{vL16}")
        A.c("store offset of reducer w inside the tile: (w>>1)*1024 + 8(w&1)")
        A.e(f"s_lshr_b32 s3, s{sW}, 1")
        A.e("s_lshl_b32 s3, s3, 10")
        A.e(f"s_add_u32 s{sKst}, s{sKst}, s3")
        A.e(f"s_and_b32 s3, s{sW}, 1")
        A.e("s_lshl_b32 s3, s3, 3")
        A.e(f"s_add_u32 s{sKst}, s{sKst}, s3")
        A.e(f"v_and_b32 v{vT}, 31, v0")
        kv_rest()

    def kv_reads(s0, gate):
        for st in range(s0, s0 + 4):
            for u in range(2):
                A.e(f"ds_read_b64_tr_b16 {v(WF+4*st+2*u,2)}, v{vTr}{doff(896*st+224*u)}")
            A.e(f"ds_read_b128 {v(XF+4*st,4)}, v{vXk+(st&3)}{doff(8192*(st>>2))}")
        if gate:
            A.c("column 28 of the weight fragment carries gate_w, so row 28 of the K product is the gate logit")
            A.e("s_mov_b32 exec_lo, 0x10000000")
            A.e("s_mov_b32 exec_hi, 0x10000000")
            for st in range(s0, s0 + 4):
                A.e(f"ds_read_b128 {v(WF+4*st,4)}, v{vGa}{doff(32*st)}")
            A.e("s_mov_b64 exec, -1")

    def kv_mfma(s0, isk):
        for st in range(s0, s0 + 4):
            a_, b_ = (WF + 4 * st, XF + 4 * st) if isk else (XF + 4 * st, WF + 4 * st)
            A.e(mfma32(KACC, a_, b_, None if st == 0 else KACC))

    def kv_rest():
        A.e(f"s_cmp_lt_u32 s{sHG}, 2")
        A.e("s_cbranch_scc0 k_vjob")
        for isk, pre in ((True, "k_k"), (False, "k_v")):
            if not isk:
                A.label("k_vjob")
            A.e(f"s_cmp_eq_u32 s{sW}, 3")
            A.e(f"s_cbranch_scc1 {pre}4")
            A.e("s_waitcnt vmcnt(8)")
            stamp("crit")
            kv_reads(0, isk)
            A.e("s_waitcnt vmcnt(1)")
            kv_reads(4, isk)
            A.e(f"s_waitcnt lgkmcnt({15 if isk else 12})")
            kv_mfma(0, isk)
            A.e("s_waitcnt lgkmcnt(0)")
            kv_mfma(4, isk)
            A.e("s_branch k_part")
            A.label(f"{pre}4")
            A.e("s_waitcnt vmcnt(1)")
            stamp("crit")
            kv_reads(0, isk)
            A.e("s_waitcnt lgkmcnt(0)")
            kv_mfma(0, isk)
            if isk:
                A.e("s_branch k_part")
        A.label("k_part")
        A.e("s_nop 7")
        A.e("s_nop 3")
        for q in range(4):
            A.e(f"ds_write_b128 v{vPart}, {v(KACC+4*q,4)}{doff(1024*q)}")
        A.c("the four partials are complete when the counter reaches 4")
        A.e("s_mov_b64 exec, 1")
        A.e(f"ds_add_u32 v{vCn}, v{vOne}")
        A.e(f"s_mov_b32 s{sT2}, 0")
        A.label("k_pspin")
        A.e(f"ds_read_b32 v{vU}, v{vCn}")
        A.e(f"s_add_u32 s{sT2}, s{sT2}, 1")
        A.e("s_waitcnt lgkmcnt(0)")
        A.e(f"v_readfirstlane_b32 s3, v{vU}")
        A.e("s_cmp_ge_u32 s3, 4")
        A.e("s_cbranch_scc1 k_pdone")
        A.e(f"s_cmp_lt_u32 s{sT2}, 0x40000")
        A.e("s_cbranch_scc1 k_pspin")
        A.label("k_pdone")
        A.e("s_mov_b64 exec, -1")
        for p in range(4):
            A.e(f"ds_read_b128 {v(RD+4*p,4)}, v{vRed}{doff(7168*p)}")
        stamp("partials")
        A.e("s_waitcnt lgkmcnt(0)")
        for r in range(4):
            A.e(f"v_add_f32 v{RD+r}, v{RD+r}, v{RD+4+r}")
            A.e(f"v_add_f32 v{RD+8+r}, v{RD+8+r}, v{RD+12+r}")
        for r in range(4):
            A.e(f"v_add_f32 v{RD+r}, v{RD+r}, v{RD+8+r}")
        vKo = RD + 4
        A.e(f"v_cvt_pk_bf16_f32 v{vKo}, v{RD}, v{RD+1}")
        A.e(f"v_cvt_pk_bf16_f32 v{vKo+1}, v{RD+2}, v{RD+3}")
        A.e(f"s_cmp_lt_u32 s{sHG}, 2")
        A.e("s_cbranch_scc0 k_vpad")
        A.e(f"s_cmp_eq_u32 s{sW}, 3")
        A.e("s_cbranch_scc0 k_kvst")
        A.c("K, registers 12..15: rows 28..31 live in the upper half-wave")
        A.e("s_mov_b32 exec_lo, 0")
        A.e(f"v_mov_b32 v{vKo}, 0")
        A.e(f"v_mov_b32 v{vKo+1}, 0")
        A.e("s_mov_b32 exec_lo, -1")
        A.e("s_branch k_kvst")
        A.label("k_vpad")
        A.e(f"v_mov_b32 v{RD+8}, 0")
        A.e(f"v_mov_b32 v{RD+9}, 0x3f803f80")
        A.e(f"v_cmp_eq_u32 vcc, 28, v{vT}")
        A.e("s_nop 1")
        A.e(f"v_cndmask_b32 v{RD+8}, v{RD+8}, v{RD+9}, vcc")
        A.e(f"v_cmp_gt_u32 vcc, 28, v{vT}")
        A.e("s_nop 1")
        A.e(f"v_cndmask_b32 v{vKo}, v{RD+8}, v{vKo}, vcc")
        A.e(f"v_cndmask_b32 v{vKo+1}, v{RD+8}, v{vKo+1}, vcc")
        A.label("k_kvst")
        A.e(f"buffer_store_dwordx2 v[{vKo}:{vKo+1}], v{vL16}, s[{SWS}:{SWS+3}], s{sKst} offen sc1")
        A.c("gate values: branch A, K tiles, wave 3, upper half-wave")
        A.e(f"s_cmp_eq_u32 s{sW}, 3")
        A.e("s_cbranch_scc0 k_nogate")
        A.e(f"s_lshl_b32 s3, s{sB}, 2")
        A.e(f"s_add_u32 s3, s3, s{sHG}")
        A.e("s_cmp_lt_u32 s3, 2")
        A.e("s_cbranch_scc0 k_nogate")
        A.e(f"v_mul_f32 v{RD+8}, {fbits(-LOG2E)}, v{RD}")
        A.e(f"v_exp_f32 v{RD+8}, v{RD+8}")
        A.e(f"v_lshlrev_b32 v{RD+9}, 2, v{vT}")
        A.e(f"v_add_f32 v{RD+8}, 1.0, v{RD+8}")
        A.e(f"v_rcp_f32 v{RD+8}, v{RD+8}")
        A.e("s_mov_b32 exec_lo, 0")
        A.e(f"buffer_store_dword v{RD+8}, v{RD+9}, s[{SWS}:{SWS+3}], s{sGst} offen sc1")
        A.e("s_mov_b32 exec_lo, -1")
        A.label("k_nogate")
        A.c("the staging area of W_k / W_v is free for W_q chunks 5, 6 once every reducer has read its partials")
        A.e("s_mov_b64 exec, 1")
        A.e(f"ds_add_u32 v{vCn}, v{vOne} offset:8")
        A.e("s_mov_b64 exec, -1")
        stamp("kv stored")
        if o["pub"] < 0:
            publish("k_pub")
        A.e("s_branch k_s1")


    def publish(lbl):
        A.c("publish the K/V tile once the stores of all four waves have drained: one 8-byte tag per replica")
        A.e("s_waitcnt vmcnt(0)")
        A.e(f"v_readfirstlane_b32 s{sN}, v{vP}")
        A.e(f"v_readfirstlane_b32 s{sN+1}, v{vP+1}")
        A.e("s_mov_b64 exec, 1")
        A.e(f"ds_add_rtn_u32 v{vU}, v{vCn}, v{vOne} offset:4")
        A.e(f"s_add_u32 s{sN}, s{sN}, {hex(TAG_LO)}")
        A.e(f"s_addc_u32 s{sN+1}, s{sN+1}, {hex(TAG_HI)}")
        A.e("s_waitcnt lgkmcnt(0)")
        A.e(f"v_readfirstlane_b32 s3, v{vU}")
        A.e("s_mov_b64 exec, -1")
        A.e("s_cmp_eq_u32 s3, 3")
        A.e(f"s_cbranch_scc0 {lbl}_np")
        A.e(f"v_lshlrev_b32 v{vU}, 10, v0")
        A.e(f"v_mov_b32 v{vP}, s{sN}")
        A.e(f"v_mov_b32 v{vP+1}, s{sN+1}")
        A.e(f"s_mov_b64 exec, {hex((1 << R) - 1)}")
        A.e(f"buffer_store_dwordx2 v[{vP}:{vP+1}], v{vU}, s[{SWS}:{SWS+3}], s{sKFp} offen sc1")
        A.e("s_mov_b64 exec, -1")
        A.label(f"{lbl}_np")
        stamp("pub")

    def poll_issue():
        A.e(f"buffer_load_dwordx4 {v(vPoll,4)}, v{vL16}, s[{SWS}:{SWS+3}], s{sKF} offen sc1")

    A.label("k_loader")
    A.c("loader w' = w-4: DMA w' of every x chunk (other 32 rows) and rows 16w'..16w'+15 of every W_q chunk")
    if o["dbgs"]:
        stamp("partials")
    A.e(f"s_sub_u32 s{sWg}, s{sW}, 4")
    if o["pf"]:
        A.c("L2 warm-up of W_q: the 32 blocks with equal id&7 touch 98 lines each, 25 per loader")
        A.e("s_lshr_b32 s3, s2, 3")
        A.e("s_mul_i32 s3, s3, 98")
        A.e(f"s_mul_i32 s{sT}, s{sWg}, 25")
        A.e(f"s_add_u32 s3, s3, s{sT}")
        A.e(f"v_add_u32 v{vU}, s3, v0")
        A.e(f"v_lshlrev_b32 v{vU}, 7, v{vU}")
        A.e(f"s_mov_b32 s{SWO+2}, {W_BYTES}")
        A.e(f"s_mov_b32 s{SWO+3}, 0x20000")
    A.e(f"s_xor_b32 s{sT2}, s{sT3}, 1")
    A.e(f"s_mul_i32 s{sT}, s{sT2}, {32*896}")
    A.e(f"s_add_u32 s{sXg}, s{sXg}, s{sT}")
    A.e(f"s_mul_i32 s{sT}, s{sWg}, 7168")
    A.e(f"s_add_u32 s{sXg}, s{sXg}, s{sT}")
    A.e(f"s_lshl_b32 s{sXl}, s{sT2}, 12")
    A.e(f"s_lshl_b32 s{sT}, s{sWg}, 10")
    A.e(f"s_add_u32 s{sXl}, s{sXl}, s{sT}")
    A.e(f"s_add_u32 s{sXl}, s{sXl}, {XL}")
    A.e(f"s_and_b32 s{sT}, s{sW}, 1")
    A.e(f"s_lshl_b32 s{sT}, s{sT}, 6")
    A.e(f"v_xor_b32 v{vXe}, s{sT}, v{vXe}")
    A.e(f"s_mul_i32 s{sWl0}, s{sWg}, 3584")
    A.e(f"s_mul_i32 s{sWg}, s{sWg}, 14336")
    A.e("s_waitcnt lgkmcnt(0)")
    prof_init()
    stamp("kernarg")
    if o["pf"]:
        A.e(f"s_mov_b32 s{SWO}, s6")
        A.e(f"s_mov_b32 s{SWO+1}, s7")
        A.e("s_mov_b64 exec, 0x1ffffff")
        A.e(f"buffer_load_dword v190, v{vU}, s[{SWO}:{SWO+3}], 0 offen")
        A.e("s_mov_b64 exec, -1")
    A.c("W source: p = 64u+i, pos = p/14, k = (pos&~7) + 4(pos&1) + ((pos&7)>>1), k*896 + (p%14)*16; u = 1 biased by the instruction offset")
    for u, dst in ((0, vW0), (1, vW1)):
        A.e(f"v_add_u32 v{vT}, {64*u}, v0")
        A.e(f"v_mul_u32_u24 v{vT2}, 4682, v{vT}")
        A.e(f"v_lshrrev_b32 v{vT2}, 16, v{vT2}")
        A.e(f"v_mul_u32_u24 v{vU}, 14, v{vT2}")
        A.e(f"v_sub_u32 v{vT}, v{vT}, v{vU}")
        A.e(f"v_lshlrev_b32 v{vT}, 4, v{vT}")
        A.e(f"v_and_b32 v{vU}, 8, v{vT2}")
        A.e(f"v_and_b32 v{vU2}, 1, v{vT2}")
        A.e(f"v_lshl_add_u32 v{vU}, v{vU2}, 2, v{vU}")
        A.e(f"v_bfe_u32 v{vU2}, v{vT2}, 1, 2")
        A.e(f"v_add_u32 v{vU}, v{vU}, v{vU2}")
        A.e(f"v_mul_u32_u24 v{vU}, 896, v{vU}")
        A.e(f"v_add_u32 v{dst}, v{vU}, v{vT}")
    A.e(f"v_subrev_u32 v{vW1}, 1024, v{vW1}")
    A.e(f"s_mul_i32 s3, s{sHG}, 224")
    A.e(f"s_add_u32 s{SWQ}, s6, s3")
    A.e(f"s_addc_u32 s{SWQ+1}, s7, 0")
    A.e(f"s_sub_u32 s{SWQ+2}, {W_BYTES}, s3")
    A.e(f"s_mov_b32 s{SWQ+3}, 0x20000")
    if o["b0l"] == 0:
        A.e("s_barrier")
        stamp("B0")

    def wq_dma(c):
        base = WA + 14336 * c if c < 5 else KVR + 14336 * (c - 5)
        for vw in range(2):
            A.e(f"s_add_u32 m0, s{sWl0}, {base + 1792*vw}")
            A.e(f"s_add_u32 s{sD}, s{sWg}, {57344*c + 7168*vw}")
            A.e(f"buffer_load_dwordx4 v{vW0}, s[{SWQ}:{SWQ+3}], s{sD} offen lds")
            A.e("s_mov_b32 exec_hi, 0xffff")
            A.e(f"buffer_load_dwordx4 v{vW1}, s[{SWQ}:{SWQ+3}], s{sD} offen offset:1024 lds")
            A.e("s_mov_b32 exec_hi, -1")

    parts = split_parts(setup_common, 5)
    for c in range(5):
        x_dma(vXe, 8192 * c, 128 * c)
        wq_dma(c)
        if o["b0l"] == c + 1:
            A.e("s_barrier")
            stamp("B0")
        if o["ilv"]:
            A.lines += parts[c]
    for c in (5, 6):
        x_dma(vXe, 8192 * c, 128 * c)
    if not o["ilv"]:
        for pt in parts:
            A.lines += pt
    stamp("crit")
    A.c("W_q chunks 5, 6 reuse the staging area of the K/V waves")
    A.e(f"s_mov_b32 s{sT2}, 0")
    A.label("k_cspin")
    A.e(f"ds_read_b32 v{vU}, v{vCn} offset:8")
    A.e(f"s_add_u32 s{sT2}, s{sT2}, 1")
    A.e("s_waitcnt lgkmcnt(0)")
    A.e(f"v_readfirstlane_b32 s3, v{vU}")
    A.e("s_cmp_ge_u32 s3, 4")
    A.e("s_cbranch_scc1 k_cdone")
    A.e(f"s_cmp_lt_u32 s{sT2}, 0x40000")
    A.e("s_cbranch_scc1 k_cspin")
    A.label("k_cdone")
    if not o["dbgs"]:
        stamp("partials")
    for c in (5, 6):
        wq_dma(c)
    stamp("kv stored")
    s1c = o["s1c"]
    A.e(f"s_waitcnt vmcnt({35 - 5 * s1c})")

    A.label("k_s1")
    if o["prio"]:
        A.e("s_setprio 0")
    A.e("s_barrier")
    stamp("S1")

    def kv_dma(chunk, k):
        A.vmem(f"buffer_load_dwordx4 v{vL16}, s[{SKV}:{SKV+3}], s{sT} offen{boff(1024*k)} sc1 lds", ("KV", chunk))

    def kv_m0(chunk):
        A.e(f"s_add_u32 m0, s{sKVL}, {(chunk % 3) * 32768}")
        A.e(f"s_add_u32 s{sT}, s{sKVL}, {chunk * 32768}")

    def q_mfma(c):
        b0 = QB[c & 1]
        for st in range(4):
            A.e(mfma32(vS0, b0 + 4 * st, b0 + 16 + 4 * st, None if (c == 0 and st == 0) else vS0))

    def q_reads(c):
        b0 = QB[c & 1]
        wb, wo_ = (vWa, 14336 * c) if c < 4 else (vWa4, 0) if c == 4 else (vWa5, 14336 * (c - 5))
        for st in range(4):
            for u in range(2):
                A.ds(f"ds_read_b64_tr_b16 {v(b0+4*st+2*u,2)}, v{wb}{doff(wo_+(16*st+u)*224)}", ("q", c))
            A.ds(f"ds_read_b128 {v(b0+16+4*st,4)}, v{vXa+st}{doff(8192*c)}", ("q", c))

    def flags_wait(lbl, reg, lines, have_first):
        A.e(f"s_mov_b32 s{sT2}, 0")
        if not have_first:
            A.e(f"s_branch {lbl}_ld")
        A.label(f"{lbl}_chk")
        A.e(f"v_cmp_ne_u64 vcc, s[{sN}:{sN+1}], v[{reg}:{reg+1}]")
        A.e(f"v_cmp_ne_u64 s[62:63], s[{sN}:{sN+1}], v[{reg+2}:{reg+3}]")
        A.e("s_or_b64 vcc, vcc, s[62:63]")
        if lines < 8:
            A.e(f"s_and_b32 s62, vcc_lo, {hex((1 << (8 * lines)) - 1)}")
        else:
            A.e("s_cmp_lg_u64 vcc, 0")
        A.e(f"s_cbranch_scc0 {lbl}_ok")
        A.e(f"s_cmp_lt_u32 s{sT2}, 0x40000")
        A.e(f"s_cbranch_scc0 {lbl}_ok")
        A.label(f"{lbl}_ld")
        A.e(f"buffer_load_dwordx4 {v(reg,4)}, v{vL16}, s[{SWS}:{SWS+3}], s{sKF} offen sc1")
        A.e(f"s_add_u32 s{sT2}, s{sT2}, 1")
        A.e("s_waitcnt vmcnt(0)")
        A.e(f"s_branch {lbl}_chk")
        A.label(f"{lbl}_ok")

    def kv_first(ch):
        kv_m0(ch)
        A.e("s_nop 0")
        for k in range(4):
            kv_dma(ch, k)

    for c in range(7):
        if c == o["s2c"]:
            A.e("s_waitcnt vmcnt(8)")
            A.e("s_barrier")
            stamp("S2")
        if c == 5:
            A.wait(lg=[("q", 4)])
            A.e("s_waitcnt vmcnt(0)")
            stamp("w56")
            A.e(f"s_cmp_eq_u32 s{sW}, 0")
            A.e("s_cbranch_scc0 k_kvseen")
            flags_wait("k_kvp", vPoll, o["l0"], True)
            A.label("k_kvseen")
            A.e("s_barrier")
            stamp("S3")
            kv_first(0)
        q_reads(c)
        if c > 0:
            A.wait(lg=[("q", c - 1)])
            q_mfma(c - 1)
        if c == 5:
            kv_first(1)
        if c == o["pub"]:
            A.e(f"s_cmp_lt_u32 s{sW}, 4")
            A.e("s_cbranch_scc0 k_nopub")
            publish("k_pub")
            A.label("k_nopub")
        if c == o["pc"]:
            A.e(f"s_cmp_eq_u32 s{sW}, 0")
            A.e("s_cbranch_scc0 k_nopoll0")
            poll_issue()
            A.label("k_nopoll0")
    A.wait0(vm=False)
    q_mfma(6)
    stamp("qproj")
    A.e("s_nop 7")
    A.e("s_nop 3")
    sc = (28 ** -0.5) * LOG2E
    A.e(f"s_mov_b32 s{sT2}, {fbits(sc)}")
    for r in range(16):
        A.e(f"v_mul_f32 v{vS0+r}, s{sT2}, v{vS0+r}")
    for k in range(8):
        A.e(f"v_cvt_pk_bf16_f32 v{vQ+k}, v{vS0+2*k}, v{vS0+2*k+1}")
    A.e("s_mov_b32 exec_lo, 0")
    A.e(f"v_mov_b32 v{vQ+6}, 0")
    A.e(f"v_mov_b32 v{vQ+7}, 0")
    A.e("s_mov_b32 exec_lo, -1")

    def ring(t, part):
        slot = (t >> 3) % 3
        off = slot * 32768 + (t & 7) * 4096 + part * 1024
        return (vL16, off) if off < 65536 else (vL16b, off - 65536)

    def rd(dst, t, part):
        base, off = ring(t, part)
        A.ds(f"ds_read_b128 {v(dst,4)}, v{base}{doff(off)}", (t, part))

    def wo_dma(r, u):
        A.e(f"s_add_u32 m0, s{sWoL}, {1024*u}")
        A.e(f"s_add_u32 s{sT2}, s{sWoG}, {(112*r+16*u)*896}")
        return (f"buffer_load_dwordx4 v{vWoS}, s[{SWO}:{SWO+3}], s{sT2} offen lds", ("WO", r))

    def wo_rd(r, n):
        hd, s_, u = n >> 2, (n >> 1) & 1, n & 1
        base = vWoA0 if (s_ == 1 and u == 1) else vWoA
        dst = WO + 8 * (4 * r + hd) + 4 * s_ + 2 * u
        A.ds(f"ds_read_b64_tr_b16 {v(dst,2)}, v{base}{doff((28*hd+16*s_+8*u)*64)}", ("wo", r))

    A.label("k_attn")
    A.e(waitcnt(A.vm.need(("KV", 0)), 0)); A.lg.drain()
    A.e("s_barrier")
    stamp("attn start", cyc=0)
    rd(vK, 0, 0); rd(vK + 4, 0, 1)
    A.wait(lg=[(0, 1)])
    A.e(mfma32(vS0, vK, vQ, vC))
    A.e(mfma32(vS0, vK + 4, vQ + 4, vS0))
    rd(vK, 1, 0); rd(vK + 4, 1, 1); rd(vV, 0, 2)
    A.e("s_nop 7")
    A.e("s_nop 3")
    for t in range(64):
        n, i = t >> 3, t & 7
        Sc = vS0 if t % 2 == 0 else vS1
        Sn = vS1 if t % 2 == 0 else vS0
        E = lambda r: A.e(f"v_exp_f32 v{Sc+r}, v{Sc+r}")
        C = lambda k: A.e(f"v_cvt_pk_bf16_f32 v{vP+k}, v{Sc+2*k}, v{Sc+2*k+1}")
        kvp = (n < 6 and i < 4)
        wod = []
        if n % 2 == 0 and i >= 4:
            wod = [2 * (i - 4), 2 * (i - 4) + 1] if i < 7 else [6]
        wor = []
        if n % 2 == 0 and n >= 2 and i < 4:
            wor = list(range(4 * i, 4 * i + 4))
        if o["prio"] and i % 2 == 0:
            A.e(f"s_setprio {3 - i // 2}")
        if t == 0:
            A.c("wave 0 fetches all K/V flags of the branch; they are checked in front of the barrier that ends this chunk")
            A.e(f"s_cmp_eq_u32 s{sW}, 0")
            A.e("s_cbranch_scc0 k_nop3")
            A.e(f"buffer_load_dwordx4 {v(WO,4)}, v{vL16}, s[{SWS}:{SWS+3}], s{sKF} offen sc1")
            A.label("k_nop3")
        if kvp and i == 0:
            kv_m0(n + 2)
        tags = []
        if t < 63: tags.append((t + 1, 0))
        if t > 0: tags.append((t - 1, 3))
        A.wait(lg=tags)
        if t < 63:
            A.e(mfma32(Sn, vK, vQ, vC))
        if t + 2 < 64:
            rd(vK, t + 2, 0)
        E(0); E(1); E(2); C(0); E(3)
        if t > 0:
            A.e(mfma32(vO, vV + 4, vP + 4, vO))
        rd(vV + 4, t, 3)
        if kvp:
            kv_dma(n + 2, i)
        pend = None
        if wod:
            A.wait(lg=[("wo", n // 2 - 1)])
            pend = wo_dma(n // 2, wod[0])
        E(4)
        if pend:
            A.vmem(*pend)
        C(1); E(5); E(6); C(2); E(7)
        tags = [(t, 2)]
        if t < 63: tags.append((t + 1, 1))
        A.wait(lg=tags)
        if t < 63:
            A.e(mfma32(Sn, vK + 4, vQ + 4, Sn))
        if t + 2 < 64:
            rd(vK + 4, t + 2, 1)
        pend = None
        if len(wod) > 1:
            pend = wo_dma(n // 2, wod[1])
        E(8)
        if pend:
            A.vmem(*pend)
        C(3); E(9); E(10); C(4); E(11)
        A.e(mfma32(vO, vV, vP, None if t == 0 else vO))
        if t + 1 < 64:
            rd(vV, t + 1, 2)
        for x in wor:
            wo_rd(n // 2 - 1, x)
        E(12); C(5); E(13); E(14); E(15); C(6); C(7)
        if t == 5:
            A.c("chunk 1 is read from the next tile on")
            A.e(waitcnt(A.vm.need(("KV", 1)), None))
            A.e("s_barrier")
        if i == 7 and n < 6:
            a = A.vm.need(("KV", n + 2))
            b = A.lg.need((t, 3))
            A.e(waitcnt(a, b))
            if t == 7:
                A.e(f"s_cmp_eq_u32 s{sW}, 0")
                A.e("s_cbranch_scc0 k_allseen")
                flags_wait("k_allp", WO, 8, True)
                A.label("k_allseen")
            A.e("s_barrier")
    A.wait(lg=[(63, 3)])
    A.e("s_nop 1")
    A.e(mfma32(vO, vV + 4, vP + 4, vO))
    if o["prio"]:
        A.e("s_setprio 0")
    stamp("attn end", cyc=1)

    A.e("s_nop 7")
    A.e("s_nop 3")
    vLs, vLt, vSum = TMP + 8, TMP + 9, TMP + 10
    A.e(f"v_mov_b32 v{vLs}, v{vO+12}")
    A.e(f"v_mov_b32 v{vLt}, v{vO+12}")
    A.e(f"v_add_f32 v{vSum}, v{vO}, v{vO+1}")
    A.e(f"v_add_f32 v{vSum}, v{vSum}, v{vO+2}")
    A.e(f"v_permlane32_swap_b32 v{vLs}, v{vLt}")
    for r in range(3, 16):
        A.e(f"v_add_f32 v{vSum}, v{vSum}, v{vO+r}")
    A.e(f"v_rcp_f32 v{vLs}, v{vLt}")
    A.c("row sum must lie in [2^-24, 2^100] and every accumulator must be finite, else redo with the true row maximum")
    A.e(f"s_mov_b32 s{sT}, 0x207")
    A.e(f"v_cmp_class_f32 vcc, v{vSum}, s{sT}")
    A.e(f"s_mov_b32 s{sT}, {fbits(2.0**-24)}")
    A.e(f"v_cmp_nle_f32 s[62:63], s{sT}, v{vLt}")
    A.e("s_or_b64 vcc, vcc, s[62:63]")
    A.e(f"s_mov_b32 s{sT}, {fbits(2.0**100)}")
    A.e(f"v_cmp_nge_f32 s[62:63], s{sT}, v{vLt}")
    A.e("s_or_b64 vcc, vcc, s[62:63]")
    A.e("s_cmp_lg_u64 vcc, 0")
    A.e(f"s_cselect_b32 s{sT}, 1, 0")
    A.e(f"s_cmp_eq_u32 s{sPass}, 0")
    A.e(f"s_cselect_b32 s{sT}, s{sT}, 0")
    A.e(f"v_mov_b32 v{vT}, s{sT}")
    A.e(f"s_lshl_b32 s3, s{sW}, 2")
    A.e(f"s_add_u32 s3, s3, {FAILW}")
    A.e(f"v_mov_b32 v{vT2}, s3")
    A.e("s_mov_b64 exec, 1")
    A.e(f"ds_write_b32 v{vT2}, v{vT}")
    A.e("s_mov_b64 exec, -1")
    for r in range(16):
        A.e(f"v_mul_f32 v{vO+r}, v{vO+r}, v{vLs}")
    for k in range(8):
        A.e(f"v_cvt_pk_bf16_f32 v{vP+k}, v{vO+2*k}, v{vO+2*k+1}")
    A.e("s_mov_b32 exec_lo, 0")
    A.e(f"v_mov_b32 v{vP+6}, 0")
    A.e(f"v_mov_b32 v{vP+7}, 0")
    A.e("s_mov_b32 exec_lo, -1")
    A.e(f"buffer_store_dwordx4 {v(vP,4)}, v{vL16}, s[{SWS}:{SWS+3}], s{sOst} offen sc1")
    A.e(f"buffer_store_dwordx4 {v(vP+4,4)}, v{vL16}, s[{SWS}:{SWS+3}], s{sOst} offen offset:1024 sc1")
    A.e(f"v_and_b32 v{vT}, 7, v0")
    A.e(f"v_lshlrev_b32 v{vT}, 2, v{vT}")
    A.e(f"v_add_u32 v{vT2}, {FAILW}, v{vT}")
    A.e(f"v_lshlrev_b32 v{vT}, 1, v{vT}")
    A.e("s_waitcnt lgkmcnt(0)")
    A.e("s_barrier")
    A.e(f"ds_read_b32 v{vT2}, v{vT2}")
    A.e("s_waitcnt vmcnt(0) lgkmcnt(0)")
    A.vm.drain(); A.lg.drain()
    A.e(f"v_cmp_ne_u32 vcc, 0, v{vT2}")
    A.e("s_cbranch_vccnz k_fallback")
    A.e("s_barrier")
    stamp("norm+drain")
    A.c("publish: one 8-byte tag per member b*4 + hg")
    A.e(f"s_cmp_eq_u32 s{sW}, 0")
    A.e("s_cbranch_scc0 k_noflag")
    A.e(f"s_lshl_b32 s3, s{sB}, 2")
    A.e(f"s_add_u32 s3, s3, s{sHG}")
    A.e("s_lshl_b32 s3, s3, 3")
    A.e(f"s_add_u32 s3, s3, s{sFlg}")
    A.e(f"v_mov_b32 v{vK}, s{sN}")
    A.e(f"v_mov_b32 v{vK+1}, s{sN+1}")
    A.e(f"v_mov_b32 v{TMP}, 0")
    A.e("s_mov_b64 exec, 1")
    A.e(f"buffer_store_dwordx2 v[{vK}:{vK+1}], v{TMP}, s[{SWS}:{SWS+3}], s3 offen sc1")
    A.e("s_mov_b64 exec, -1")
    A.label("k_noflag")
    for x in range(16):
        wo_rd(3, x)
    A.e(f"s_cmp_eq_u32 s{sW}, 0")
    A.e("s_cbranch_scc0 k_nopoll")
    A.e(f"s_mov_b32 s{sCnt}, 0")
    A.label("k_poll")
    A.e(f"buffer_load_dwordx2 v[{vK+2}:{vK+3}], v{vT}, s[{SWS}:{SWS+3}], s{sFlg} offen sc1")
    A.e(f"s_add_u32 s{sCnt}, s{sCnt}, 1")
    A.e("s_waitcnt vmcnt(0)")
    A.e(f"v_cmp_ne_u64 vcc, s[{sN}:{sN+1}], v[{vK+2}:{vK+3}]")
    A.e("s_cbranch_vccz k_pollok")
    A.e(f"s_cmp_lt_u32 s{sCnt}, 0x40000")
    A.e("s_cbranch_scc1 k_poll")
    A.label("k_pollok")
    A.c("every block has read the seed by now (each member passed its K/V wait): block 0 advances it to this launch's tag")
    A.e("s_cmp_eq_u32 s2, 0")
    A.e("s_cbranch_scc0 k_nopoll")
    A.e(f"s_mov_b32 s3, {SEED_OFF}")
    A.e("s_mov_b64 exec, 1")
    A.e(f"buffer_store_dwordx2 v[{vK}:{vK+1}], v{TMP}, s[{SWS}:{SWS+3}], s3 offen sc1")
    A.e("s_mov_b64 exec, -1")
    A.label("k_nopoll")
    A.e("s_barrier")
    stamp("poll")
    A.c("o fragments: wave loads branch bb, head 4*stage + ct; LDS image [bb][head][s][lane]")
    A.e(f"s_lshl_b32 s3, s{sBB}, 15")
    A.e(f"s_lshl_b32 s{sT}, s{sCT}, 11")
    A.e(f"s_add_u32 s3, s3, s{sT}")
    A.e(f"s_add_u32 s{sT}, s3, s{sOld}")
    for st in range(4):
        A.e(f"s_add_u32 m0, s3, {8192*st}")
        A.e(f"s_add_u32 s{sT2}, s{sT}, {8192*st}")
        for k in range(2):
            A.vmem(f"buffer_load_dwordx4 v{vL16}, s[{SWS}:{SWS+3}], s{sT2} offen{boff(1024*k)} sc1 lds", ("O", st))
    A.c("gate value of the output rows: g[64mt + 32b + (l&31)]")
    A.e(f"v_and_b32 v{vT}, 31, v0")
    A.e(f"v_lshlrev_b32 v{vT}, 2, v{vT}")
    A.e(f"s_lshl_b32 s3, s{sMT}, 8")
    A.e(f"s_lshl_b32 s{sT}, s{sB}, 7")
    A.e(f"s_add_u32 s3, s3, s{sT}")
    A.e(f"s_add_u32 s3, s3, {G_OFF}")
    A.vmem(f"buffer_load_dword v{vG}, v{vT}, s[{SWS}:{SWS+3}], s3 offen sc1", "g")
    vOb = TMP + 11
    A.e(f"s_lshl_b32 s3, s{sBB}, 15")
    A.e(f"v_add_u32 v{vOb}, s3, v{vL16}")
    ACC = vC
    OB = [16, 48]

    def o_mfma(st):
        b0 = OB[st & 1]
        for hd in range(4):
            for s_ in range(2):
                H = 4 * st + hd
                A.e(mfma32(ACC, WO + 8 * H + 4 * s_, b0 + 8 * hd + 4 * s_, None if (st == 0 and hd == 0 and s_ == 0) else ACC))
    for st in range(4):
        A.wait(vm=[("O", st)])
        A.e("s_barrier")
        b0 = OB[st & 1]
        for hd in range(4):
            for s_ in range(2):
                A.ds(f"ds_read_b128 {v(b0+8*hd+4*s_,4)}, v{vOb}{doff((4*st+hd)*2048+s_*1024)}", ("ob", st))
        if st > 0:
            o_mfma(st - 1)
        A.wait(lg=[("ob", st)])
    o_mfma(3)
    A.c("exchange halves with the wave of the other branch")
    A.e(f"s_lshl_b32 s3, s{sW}, 11")
    A.e(f"s_add_u32 s3, s3, {XCH}")
    A.e(f"v_add_u32 v{vT}, s3, v{vL16}")
    A.e(f"s_xor_b32 s3, s{sW}, 4")
    A.e("s_lshl_b32 s3, s3, 11")
    A.e(f"s_add_u32 s3, s3, {XCH}")
    A.e(f"v_add_u32 v{vT2}, s3, v{vL16}")
    A.c("output offset: (64mt + 32b + (l&31))*896 + (112hg + 32ct + 16bb + 8h)*2")
    vOut = TMP + 12
    A.e(f"v_and_b32 v{vOut}, 31, v0")
    A.e(f"v_mul_u32_u24 v{vOut}, 896, v{vOut}")
    A.e(f"v_lshrrev_b32 v{TMP}, 5, v0")
    A.e(f"v_lshl_add_u32 v{vOut}, v{TMP}, 4, v{vOut}")
    A.e(f"s_lshl_b32 s3, s{sMT}, 1")
    A.e(f"s_add_u32 s3, s3, s{sB}")
    A.e(f"s_mul_i32 s3, s3, {32*896}")
    A.e(f"s_lshl_b32 s{sT}, s{sBB}, 5")
    A.e(f"s_add_u32 s3, s3, s{sT}")
    A.e(f"s_add_u32 s{sT}, s3, s{sWoG}")
    A.c("scale: g for branch A, 1 - g for branch B")
    A.wait(vm=["g"])
    A.e(f"v_sub_f32 v{TMP+1}, 1.0, v{vG}")
    A.e(f"s_cmp_eq_u32 s{sBB}, 0")
    A.e("s_cselect_b64 vcc, -1, 0")
    A.e(f"v_cndmask_b32 v{vG}, v{TMP+1}, v{vG}, vcc")
    for r in range(16):
        A.e(f"v_mul_f32 v{ACC+r}, v{ACC+r}, v{vG}")
    A.e(f"s_cmp_eq_u32 s{sBB}, 0")
    A.e("s_cbranch_scc0 k_xb")
    A.e(f"ds_write_b128 v{vT}, {v(ACC+8,4)}")
    A.e(f"ds_write_b128 v{vT}, {v(ACC+12,4)} offset:1024")
    for r in range(8):
        A.e(f"v_mov_b32 v{16+r}, v{ACC+r}")
    A.e("s_branch k_xj")
    A.label("k_xb")
    A.e(f"ds_write_b128 v{vT}, {v(ACC,4)}")
    A.e(f"ds_write_b128 v{vT}, {v(ACC+4,4)} offset:1024")
    for r in range(8):
        A.e(f"v_mov_b32 v{16+r}, v{ACC+8+r}")
    A.label("k_xj")
    A.e("s_waitcnt lgkmcnt(0)")
    A.e("s_barrier")
    A.e(f"ds_read_b128 v[24:27], v{vT2}")
    A.e(f"ds_read_b128 v[28:31], v{vT2} offset:1024")
    A.e("s_waitcnt lgkmcnt(0)")
    for r in range(8):
        A.e(f"v_add_f32 v{16+r}, v{16+r}, v{24+r}")
    for k in range(4):
        A.e(f"v_cvt_pk_bf16_f32 v{24+k}, v{16+2*k}, v{16+2*k+1}")
    A.e("s_nop 1")
    A.e("v_permlane32_swap_b32 v24, v26")
    A.e("v_permlane32_swap_b32 v25, v27")
    A.e(f"s_cmp_eq_u32 s{sW}, 7")
    A.e("s_cbranch_scc1 k_nostore")
    A.e(f"buffer_store_dwordx4 v[24:27], v{vOut}, s[{SOUT}:{SOUT+3}], s{sT} offen" + ["", " sc1", " nt", " sc0 sc1", " sc0 sc1 nt", " sc1 nt"][o["ost"]])
    A.label("k_nostore")
    if prof:
        A.e("s_waitcnt vmcnt(0)")
        stamp("end")
        if o.get("dbgst"):
            A.e(f"s_cmp_eq_u32 s{sW}, {o.get('dbgw', 0)}")
            A.e("s_cbranch_scc0 k_end")
            A.e("s_load_dwordx2 s[28:29], s[0:1], 96")
            A.e("s_mov_b32 s30, 256")
            A.e("s_mov_b32 s31, 0x20000")
            A.e("s_waitcnt lgkmcnt(0)")
            A.e("s_mov_b64 exec, 1")
            A.e("v_mov_b32 v1, 0")
            for k in range(min(16, len(names))):
                if o["dbgst"] == 1:
                    A.e(f"s_not_b32 s3, s{sProf}" if k == 0 else f"s_mov_b32 s3, s{sProf+k}")
                    A.e("v_mov_b32 v2, s3")
                    A.e(f"buffer_atomic_umax v2, v1, s[28:31], 0 offen{boff(4*k)}")
                else:
                    A.e("s_mov_b32 s3, 1" if k == 0 else f"s_sub_u32 s3, s{sProf+k}, s{sProf}")
                    A.e("v_mov_b32 v2, s3")
                    A.e(f"buffer_atomic_add v2, v1, s[28:31], 0 offen{boff(4*k)}")
                A.e("s_waitcnt vmcnt(0)")
            A.e("s_branch k_end")
        A.e("s_lshl_b32 s3, s2, 3")
        A.e(f"s_add_u32 s3, s3, s{sW}")
        A.e("s_lshl_b32 s3, s3, 7")
        A.e(f"s_add_u32 s3, s3, {PROF_OFF}")
        A.e(f"s_mov_b32 s{SWS+2}, 0x800000")
        A.e("s_mov_b64 exec, 1")
        A.e("v_mov_b32 v1, 0")
        for k in range(18):
            A.e(f"v_mov_b32 v2, s{sProf+k}")
            A.e(f"buffer_store_dword v2, v1, s[{SWS}:{SWS+3}], s3 offen{boff(4*k)}")
            A.e("s_waitcnt vmcnt(0)")
    A.e("s_branch k_end")

    A.label("k_fallback")
    A.e(f"s_mov_b32 s{sPass}, 1")
    vM = TMP + 8
    A.e(f"v_mov_b32 v{vM}, 0xff800000")
    A.e(f"s_mov_b32 s{sT}, 0")
    A.label("k_maxloop")
    A.e(f"buffer_load_dwordx4 {v(vK,4)}, v{vL16}, s[{SKV}:{SKV+3}], s{sT} offen sc1")
    A.e(f"buffer_load_dwordx4 {v(vK+4,4)}, v{vL16}, s[{SKV}:{SKV+3}], s{sT} offen offset:1024 sc1")
    A.e("s_waitcnt vmcnt(0)")
    A.e(mfma32(vS0, vK, vQ, None))
    A.e(mfma32(vS0, vK + 4, vQ + 4, vS0))
    A.e(f"s_add_u32 s{sT}, s{sT}, 4096")
    A.e("s_nop 7")
    A.e("s_nop 3")
    for k in range(8):
        A.e(f"v_max3_f32 v{vM}, v{vS0+2*k}, v{vS0+2*k+1}, v{vM}")
    A.e(f"s_cmp_lt_u32 s{sT}, 0x40000")
    A.e("s_cbranch_scc1 k_maxloop")
    A.e(f"v_mov_b32 v{vM+1}, v{vM}")
    A.e("s_nop 1")
    A.e(f"v_permlane32_swap_b32 v{vM}, v{vM+1}")
    A.e("s_nop 1")
    A.e(f"v_max_f32 v{vM}, v{vM}, v{vM+1}")
    for r in range(16):
        A.e(f"v_sub_f32 v{vC+r}, 0, v{vM}")
    A.e("s_barrier")
    for ch in range(2):
        kv_m0(ch)
        A.e("s_nop 0")
        for k in range(4):
            kv_dma(ch, k)
    A.e("s_branch k_attn")
    A.label("k_kv")
    kv_job()
    A.label("k_end")
    A.e("s_endpgm")
    return A.text(), names


HEADER = """; Gated mix of two multi-query attention branches, S=2048, D=448, H=16, Dh=28, one launch.
; Each block projects one 32-row K or V tile and publishes it, projects Q for 64 rows x 4 heads, runs attention over all
; @launch grid=(256,1,1) block=(512,1,1) lds={l}
.amdgcn_target "amdgcn-amd-amdhsa--gfx950"
.text
"""

KD = """.amdhsa_kernel {name}
  .amdhsa_next_free_vgpr {nv}
  .amdhsa_next_free_sgpr 102
  .amdhsa_accum_offset {nv}
  .amdhsa_group_segment_fixed_size 0
  .amdhsa_kernarg_size 112
  .amdhsa_user_sgpr_count 2
  .amdhsa_user_sgpr_kernarg_segment_ptr 1
  .amdhsa_system_sgpr_workgroup_id_x 1
.end_amdhsa_kernel
"""


def label_offsets(text):
    import subprocess, tempfile, os, re
    lines = text.split("\n")
    marked = []
    for i, ln in enumerate(lines):
        marked.append(f"zz_{i}:")
        marked.append(ln)
    src = '.amdgcn_target "amdgcn-amd-amdhsa--gfx950"\n.text\n' + "\n".join(marked) + "\n"
    d = tempfile.mkdtemp()
    open(d + "/a.s", "w").write(src)
    subprocess.run(["clang", "-x", "assembler", "-target", "amdgcn-amd-amdhsa", "-mcpu=gfx950", "-c", d + "/a.s", "-o", d + "/a.o"], check=True)
    out = subprocess.run(["nm", d + "/a.o"], capture_output=True, text=True).stdout
    off = {}
    for ln in out.splitlines():
        m = re.match(r"([0-9a-f]+) t zz_(\d+)$", ln)
        if m:
            off[int(m.group(2))] = int(m.group(1), 16)
    return lines, off


WINDOW = 1088


def place_pads(body, pads):
    for name, _, _, _ in pads:
        body = body.replace(f"s_cbranch_scc1 {name}\n", f"s_cbranch_scc1 k_end ;@{name}\n")
    for name, ret, anchor, dist in pads:
        lines, off = label_offsets(body)
        a = 0 if anchor is None else next(i for i, ln in enumerate(lines) if ln == anchor + ":")
        target = (off[a] & ~63) + dist
        i = a
        while off[i] + 4 < target or lines[i].endswith(":") or lines[i].lstrip().startswith(";"):
            i += 1
        lines[i:i] = [f"    s_branch {name}_over", f"{name}:", f"    s_branch {ret}", f"{name}_over:"]
        body = "\n".join(lines)
    for name, _, _, _ in pads:
        body = body.replace(f"s_cbranch_scc1 k_end ;@{name}\n", f"s_cbranch_scc1 {name}\n")
    return body


def build(prof=False, opts=None):
    body, names = gen(prof, opts)
    if "k_pad_w1" in body:
        body = place_pads(body, [("k_pad_w1", "k_pad_w1_ret", None, WINDOW), ("k_pad_s1", "k_kv", "k_s1", 0),
                                 ("k_pad_kv2", "k_kv", "k_kv", WINDOW), ("k_pad_kv3", "k_kv", "k_pad_kv2", WINDOW)])
    t = HEADER.format(l=LDS)
    if prof:
        t += "; stamps: " + ",".join(names) + "\n"
    t += f".globl {KN}\n.p2align 8\n.type {KN},@function\n{KN}:\n" + body
    t += '.section .rodata,"a"\n.p2align 6\n' + KD.format(name=KN, nv=256)
    return t


if __name__ == "__main__":
    out = sys.argv[1] if len(sys.argv) > 1 else f"cdna_kernels/{NAME}.s"
    prof = "prof" in sys.argv[2:]
    opts = {}
    for a_ in sys.argv[2:]:
        if "=" in a_:
            k_, v_ = a_.split("=")
            opts[k_] = int(v_)
    open(out, "w").write(build(prof, opts))
    print("wrote", out)
```
